```python
import torch

def _softmax(x, axis=-1):
    return torch.softmax(x, dim=axis)
def _gelu(x):
    return torch.nn.functional.gelu(x, approximate="tanh")
def _silu(x):
    return torch.nn.functional.silu(x)
def _sigmoid(x):
    return torch.sigmoid(x)
def _layernorm(x, axis=-1, eps=1e-5):
    m = x.mean(dim=axis, keepdim=True)
    v = x.var(dim=axis, keepdim=True, unbiased=False)
    return (x - m) / torch.sqrt(v + eps)
def _scatter_add(tgt, idx, src, axis=0):
    return tgt.clone().index_add_(axis, idx, src)
def _segment_sum(src, seg, n):
    out = torch.zeros((n,) + src.shape[1:], dtype=src.dtype)
    return out.index_add_(0, seg, src)
def _pad(x, pw):
    flat = tuple(v for pair in reversed(pw) for v in pair)
    return torch.nn.functional.pad(x, flat)

kernel_name = 'concat_heads__gqa_block_cached__sliding_block_cached__decode'

def setup_inputs():

    _w = (lambda a: (lambda t: t.to(torch.bfloat16) if t.is_floating_point() else t)(torch.as_tensor(a)))
    def _A_setup():
        B, Sq, D = 4, 1, 512
        Hq, Hkv, Sk, Dh = 32, 8, 8192, 128
        assert Hq % Hkv == 0, (Hq, Hkv)
        return {
            "x": _w((lambda *s: torch.randn(*s, dtype=torch.bfloat16) * 0.8)(B, Sq, D)),
            "k_cache": _w((lambda *s: torch.randn(*s, dtype=torch.bfloat16) * 1.6)(B, Hkv, Sk, Dh)),
            "v_cache": _w((lambda *s: torch.randn(*s, dtype=torch.bfloat16) * 0.2)(B, Hkv, Sk, Dh)),
            "wq": _w((lambda *s: torch.randn(*s, dtype=torch.bfloat16) * 1.6)(D, Hq * Dh) * (D ** -0.5)),
            "wo": _w((lambda *s: torch.randn(*s, dtype=torch.bfloat16) * 0.2)(Hq * Dh, D) * ((Hq * Dh) ** -0.5)),
        }
    _A_in = _A_setup()

    def _B_setup():
        B, Sq, D = 4, 1, 512
        Hq, Hkv, Sk, Dh = 32, 8, 8192, 128
        assert Hq % Hkv == 0, (Hq, Hkv)
        return {
            "x": _w((lambda *s: torch.randn(*s, dtype=torch.bfloat16) * 0.8)(B, Sq, D)),
            "k_cache": _w((lambda *s: torch.randn(*s, dtype=torch.bfloat16) * 1.6)(B, Hkv, Sk, Dh)),
            "v_cache": _w((lambda *s: torch.randn(*s, dtype=torch.bfloat16) * 0.2)(B, Hkv, Sk, Dh)),
            "wq": _w((lambda *s: torch.randn(*s, dtype=torch.bfloat16) * 1.6)(D, Hq * Dh) * (D ** -0.5)),
            "wo": _w((lambda *s: torch.randn(*s, dtype=torch.bfloat16) * 0.2)(Hq * Dh, D) * ((Hq * Dh) ** -0.5)),
        }
    _B_in = _B_setup()

    return {
        "A_x": _A_in["x"],
        "A_k_cache": _A_in["k_cache"],
        "A_v_cache": _A_in["v_cache"],
        "A_wq": _A_in["wq"],
        "A_wo": _A_in["wo"],
        "B_x": _B_in["x"],
        "B_k_cache": _B_in["k_cache"],
        "B_v_cache": _B_in["v_cache"],
        "B_wq": _B_in["wq"],
        "B_wo": _B_in["wo"],
    }

def reference(A_x, A_k_cache, A_v_cache, A_wq, A_wo, B_x, B_k_cache, B_v_cache, B_wq, B_wo):
    def _A_ref(x, k_cache, v_cache, wq, wo):
        B, Sq, D = x.shape
        Hq, Dh = 32, 128
        Hkv = k_cache.shape[1]
        rep = Hq // Hkv
        q = (lambda x, *d: x.permute(*d))((x @ wq).reshape(B, Sq, Hq, Dh), 0, 2, 1, 3)
        k = (lambda x, n, axis: torch.repeat_interleave(x, n, dim=axis))(k_cache, rep, axis=1)
        v = (lambda x, n, axis: torch.repeat_interleave(x, n, dim=axis))(v_cache, rep, axis=1)
        scores = torch.einsum("bhqd,bhkd->bhqk", q, k) * (Dh ** -0.5)
        p = _softmax(scores, axis=-1)
        o = torch.einsum("bhqk,bhkd->bhqd", p, v)
        return (lambda x, *d: x.permute(*d))(o, 0, 2, 1, 3).reshape(B, Sq, Hq * Dh) @ wo

    def _B_ref(x, k_cache, v_cache, wq, wo):
        B, Sq, D = x.shape
        Hq, Dh = 32, 128
        Hkv, Sk = k_cache.shape[1], k_cache.shape[2]
        W = min(4096, max(256, Sk // 4))
        rep = Hq // Hkv
        q = (lambda x, *d: x.permute(*d))((x @ wq).reshape(B, Sq, Hq, Dh), 0, 2, 1, 3)
        k = (lambda x, n, axis: torch.repeat_interleave(x, n, dim=axis))(k_cache[:, :, Sk - W:, :], rep, axis=1)
        v = (lambda x, n, axis: torch.repeat_interleave(x, n, dim=axis))(v_cache[:, :, Sk - W:, :], rep, axis=1)
        scores = torch.einsum("bhqd,bhkd->bhqk", q, k) * (Dh ** -0.5)
        p = _softmax(scores, axis=-1)
        o = torch.einsum("bhqk,bhkd->bhqd", p, v)
        return (lambda x, *d: x.permute(*d))(o, 0, 2, 1, 3).reshape(B, Sq, Hq * Dh) @ wo

    a = _A_ref(A_x, A_k_cache, A_v_cache, A_wq, A_wo)
    b = _B_ref(B_x, B_k_cache, B_v_cache, B_wq, B_wo)
    return torch.concatenate([a, b], axis=-1)
```

```python
import re
TRANS = ('v_exp_f32', 'v_log_f32', 'v_rcp_f32', 'v_rsq_f32', 'v_sqrt_f32', 'v_sin_f32', 'v_cos_f32')
_R = re.compile(r'^(-|abs\()?([vas])(?:(\d+)|\[(\d+):(\d+)\])\)?$')
def regs(tok):
    tok = tok.strip()
    if tok in ('vcc',): return {('s', 'vcc')}
    if tok in ('exec',): return {('s', 'exec')}
    if tok == 'm0': return {('s', 'm0')}
    m = _R.match(tok)
    if not m: return set()
    k = m.group(2)
    if m.group(3) is not None: return {(k, int(m.group(3)))}
    return {(k, i) for i in range(int(m.group(4)), int(m.group(5)) + 1)}

class Ins:
    def __init__(self, text):
        self.text = text
        t = text.split(';')[0].strip()
        parts = t.split(None, 1)
        self.mn = parts[0]
        rest = parts[1] if len(parts) > 1 else ''
        ops, cur, depth = [], '', 0
        for ch in rest:
            if ch == '[': depth += 1
            if ch == ']': depth -= 1
            if ch == ',' and depth == 0:
                ops.append(cur.strip()); cur = ''
            else: cur += ch
        if cur.strip(): ops.append(cur.strip())
        mods = ''
        if ops:
            sp = ops[-1].split(None, 1)
            ops[-1] = sp[0]
            mods = sp[1] if len(sp) > 1 else ''
        self.ops, self.mods = ops, mods
        mn = self.mn
        self.kind = ('mfma' if mn.startswith('v_mfma') else 'valu' if mn.startswith('v_') else
                     'vmem' if mn.startswith(('buffer_', 'global_')) else 'ds' if mn.startswith('ds_') else 'salu')
        self.w, self.r = set(), set()
        self.C = set(); self.AB = set()
        R = [regs(o) for o in ops]
        if self.kind == 'mfma':
            self.w = R[0]; self.AB = R[1] | R[2]; self.C = R[3]; self.r = self.AB | self.C
        elif self.kind == 'valu':
            if 'permlane' in mn and 'swap' in mn:
                self.w = R[0] | R[1]; self.r = R[0] | R[1]
            else:
                self.w = R[0]
                for x in R[1:]: self.r |= x
                if mn.startswith(('v_fmac', 'v_pk_fmac', 'v_dot2c')): self.r |= R[0]
                if '_co_' in mn and len(R) > 1: self.w |= R[1]
                if 'dpp' in mn and ('bank_mask:0xf' not in mods or 'row_mask:0xf' not in mods): self.r |= R[0]
        elif self.kind == 'vmem':
            lds = ' lds' in (' ' + mods)
            if 'load' in mn and not lds:
                self.w = R[0]
                for x in R[1:]: self.r |= x
            else:
                for x in R: self.r |= x
                if 'atomic' in mn and 'sc0' in mods: self.w = R[0]
            self.lds = lds
            if lds: self.r |= {('s', 'm0')}
        elif self.kind == 'ds':
            if 'read' in mn or 'rtn' in mn or 'permute' in mn or 'swizzle' in mn:
                self.w = R[0]
                for x in R[1:]: self.r |= x
            else:
                for x in R: self.r |= x
        else:
            if R and not mn.startswith(('s_cmp', 's_cbranch', 's_branch', 's_waitcnt', 's_barrier', 's_nop', 's_endpgm', 's_sleep', 's_setprio', 's_bitcmp')):
                self.w = R[0]
                for x in R[1:]: self.r |= x
                if 'saveexec' in mn: self.w |= {('s', 'exec')}
            else:
                for x in R: self.r |= x
        self.dpp = self.kind == 'valu' and ('dpp' in mn)
        self.states = 1
        if mn == 's_nop': self.states = int(ops[0]) + 1

def need(p, c):
    n = 0
    vw = {x for x in p.w if x[0] in 'va'}
    sw = {x for x in p.w if x[0] == 's'}
    if p.kind == 'valu':
        if c.kind == 'mfma' and vw & c.r: n = max(n, 2)
        if c.kind == 'valu':
            if (c.dpp or 'permlane' in c.mn) and vw & c.r: n = max(n, 2)
            if c.mn.startswith(('v_readfirstlane', 'v_readlane')) and vw & c.r: n = max(n, 1)
            if p.mn.startswith(TRANS) and vw & c.r: n = max(n, 1)
            if sw & c.r: n = max(n, 4 if c.mn.startswith(('v_readlane', 'v_writelane')) else 2)
        if c.kind == 'vmem' and sw & c.r: n = max(n, 5)
        if c.kind == 'salu' and sw & c.r: n = max(n, 1)
    if p.kind == 'mfma':
        if c.kind == 'mfma':
            if p.w & c.AB: n = max(n, 8)
            if p.w & c.C and p.w != c.C: n = max(n, 6)
            if p.w & c.w and not (p.w & c.C): n = max(n, 8)
        elif c.kind in ('valu', 'vmem', 'ds'):
            if p.w & (c.r | c.w): n = max(n, 8)
            if c.kind == 'valu' and p.C & c.w: n = max(n, 3)
    if p.kind == 'salu' and ('s', 'm0') in p.w and c.kind == 'vmem' and getattr(c, 'lds', False): n = max(n, 1)
    if p.kind == 'vmem' and 'store' in p.mn and ('x4' in p.mn or 'x3' in p.mn):
        data = regs(p.ops[0]) if p.mn.startswith('buffer') else regs(p.ops[1])
        if data & c.w: n = max(n, 2)
    return n

class Asm:
    def __init__(self):
        self.lines = []; self.hist = []
        self.nops = 0
    def raw(self, t):
        self.lines.append(t)
    def label(self, name, pad=True):
        self.lines.append(name + ':')
    def fence(self):
        worst = 0; dist = 0
        for p in reversed(self.hist[-12:]):
            lim = 8 if p.kind == 'mfma' else 5 if (p.kind == 'valu' and any(x[0] == 's' for x in p.w)) else 2 if p.kind in ('valu', 'vmem') else 1 if ('s', 'm0') in p.w else 0
            worst = max(worst, lim - dist)
            dist += p.states
        if worst > 0: self._nop(worst)
    def _nop(self, k):
        while k > 0:
            j = min(k, 16)
            i = Ins(f's_nop {j-1}')
            self.lines.append('    ' + i.text); self.hist.append(i); k -= j
            self.nops += 1
    def __call__(self, text):
        for t in text.split('\n'):
            t = t.strip()
            if not t: continue
            if t.startswith(';'):
                self.lines.append('    ' + t); continue
            c = Ins(t)
            dist = 0; pad = 0
            for p in reversed(self.hist[-16:]):
                pad = max(pad, need(p, c) - dist)
                dist += p.states
                if dist >= 12: break
            if pad > 0: self._nop(pad)
            self.lines.append('    ' + t); self.hist.append(c)
    def text(self):
        return '\n'.join(self.lines) + '\n'
```

```python
import sys, math, struct
from asmlib import Asm
KN = 'concat_heads__gqa_block_cached__sliding_block_cached__decode'
HDR = open('cdna_kernels/' + KN + '.s.ref').read().split('; Override launch')[0]

WS_Q  = 0x00000
WS_ML = 0x10000
WS_O1 = 0x20000
WS_P2 = 0xA0000
WS_SIZE = 0x120000
STAMP_OFF = 0x10000000
OOB = 0x7ffffff0
L_WQ  = 0
L_QP  = 32768
L_MLB = L_QP + 2048
L_MLA = L_MLB + 128
L_ACB = L_MLA + 128
L_ACA = L_ACB + 8192
L_OUT = L_ACA + 8192
L_END = L_OUT + 8192
CSC = math.log2(math.e) / math.sqrt(128.0)
def f2u(x): return struct.unpack('<I', struct.pack('<f', x))[0]
DPPF = 'row_mask:0xf bank_mask:0xf'

def gen(D=8, D0=16, poll_gap=8, budget=300, stamps=False, spin=100000, outsc='', NSLOT=96):
    a = Asm()
    KA, VA, KB, VB, WQ, WO, XS, WS, DBG, OUT = 8, 12, 16, 20, 24, 28, 32, 36, 40, 44
    sW, sT0, sT1, sT2, sT3, sOFF, sC, sFLG, sCNT, sLW = 48, 49, 50, 51, 52, 53, 54, 55, 56, 57
    sQr, sQw, sSL, sCG, sP2w, sP2r, sOUT, sMSK = 58, 59, 60, 61, 62, 63, 64, 65
    pAx, pAk, pAv, pAwq, pAwo, pBx, pBk, pBv, pBwq, pBwo, pOut, pDbg, pWs = range(68, 94, 2)
    srd = lambda r: f's[{r}:{r+3}]'
    vL, vK, vV, vT0, vT1, vT2, vT3, vPOLL = 0, 1, 2, 3, 4, 5, 6, 7
    vSEL = 8
    vM, vLS, vAL, vMC = 12, 13, 14, 15
    QA, QB, S, P, ACC = 16, 32, 48, 64, 72
    XP = 80
    TM = 88
    vLDW, vLDH, vLQ, vG16, vI16, vWOo = 120, 121, 122, 123, 124, 125
    vMLo, vO1o = 126, 127
    def slot(n):
        n %= NSLOT
        return ('a', n*4) if n < 64 else ('v', 128 + (n-64)*4)
    def rr(sl, lo, hi): return f'{sl[0]}[{sl[1]+lo}:{sl[1]+hi}]'
    vr = lambda r, n: f'v[{r}:{r+n-1}]'
    stl = []
    def stamp(name):
        if stamps:
            r = 100 if not stl else 68 + 2*(len(stl)-1)
            assert r <= 98 or not stl
            a(f's_memrealtime s[{r}:{r+1}]'); stl.append((r, name))

    a.raw(HDR.rstrip())
    a.raw(f'; @launch grid=(256,1,1) block=(256,1,1) lds={L_END}')
    a.raw('.amdgcn_target "amdgcn-amd-amdhsa--gfx950"\n.text')
    a.raw(f'.globl {KN}_kernel\n.p2align 8\n.type {KN}_kernel,@function\n{KN}_kernel:')
    a('s_cmp_ge_u32 s2, 256')
    a('s_cbranch_scc1 L_end')
    stamp('start')
    a('s_load_dwordx16 s[68:83], s[0:1], 0')
    a('s_load_dwordx8 s[84:91], s[0:1], 64')
    a('s_load_dwordx2 s[92:93], s[0:1], 96')
    a(f'v_lshrrev_b32 v{vT0}, 6, v0')
    a(f'v_and_b32 v{vL}, 63, v0')
    a(f'v_readfirstlane_b32 s{sW}, v{vT0}')
    a(f'v_lshrrev_b32 v{vG16}, 4, v{vL}')
    a(f'v_lshlrev_b32 v{vG16}, 4, v{vG16}')
    a(f'v_and_b32 v{vI16}, 15, v{vL}')
    a(f'v_lshlrev_b32 v{vI16}, 4, v{vI16}')
    a(f'v_lshlrev_b32 v{vV}, 4, v{vL}')
    a(f'v_lshrrev_b32 v{vT1}, 2, v{vL}')
    a(f'v_lshlrev_b32 v{vT1}, 13, v{vT1}')
    a(f'v_and_b32 v{vT0}, 3, v{vL}')
    a(f'v_lshl_add_u32 v{vT1}, v{vT0}, 4, v{vT1}')
    a(f'v_lshl_add_u32 v{vT2}, v{vT0}, 10, v{vG16}')
    a(f'v_bfe_u32 v{vT3}, v{vL}, 2, 2')
    a(f'v_lshl_add_u32 v{vK}, v{vT3}, 8, v{vT2}')
    a(f's_and_b32 s{sT0}, s2, 7')
    a(f's_lshr_b32 s{sT1}, s2, 3')
    a(f's_lshl_b32 s{sT2}, s{sT1}, 21')
    a(f's_lshl_b32 s{sT3}, s{sW}, 12')
    a(f's_add_u32 s{sT2}, s{sT2}, s{sT3}')
    a(f's_lshl_b32 s3, s{sT0}, 18')
    a(f's_add_u32 s3, s3, s{sT2}')
    a(f's_lshl_b32 s4, s{sT0}, 16')
    a(f's_add_u32 s4, s4, s{sT2}')
    a(f's_add_u32 s4, s4, {6144*256}')
    a(f's_and_b32 s5, s{sT1}, 15')
    a(f's_lshl_b32 s6, s{sT0}, 4')
    a(f's_add_u32 s5, s5, s6')
    a(f's_lshl_b32 s5, s5, 6')
    a(f's_lshr_b32 s7, s2, 7')
    a(f's_lshl_b32 s6, s7, 15')
    a(f's_add_u32 s{sQw}, s5, s6')
    a(f's_lshl_b32 s6, s{sW}, 20')
    a(f's_add_u32 s5, s5, s6')
    a(f's_lshl_b32 s{sLW}, s{sW}, 13')
    a('s_waitcnt lgkmcnt(0)')
    a('s_cmp_eq_u32 s7, 0')
    a(f's_cselect_b32 s{WQ}, s{pAwq}, s{pBwq}')
    a(f's_cselect_b32 s{WQ+1}, s{pAwq+1}, s{pBwq+1}')
    a(f's_cselect_b32 s{XS}, s{pAx}, s{pBx}')
    a(f's_cselect_b32 s{XS+1}, s{pAx+1}, s{pBx+1}')
    a(f's_cselect_b32 s{WO}, s{pAwo}, s{pBwo}')
    a(f's_cselect_b32 s{WO+1}, s{pAwo+1}, s{pBwo+1}')
    a(f's_add_u32 s{WQ}, s{WQ}, s5')
    a(f's_addc_u32 s{WQ+1}, s{WQ+1}, 0')
    a(f's_sub_u32 s{WQ+2}, {512*8192}, s5')
    a(f's_mov_b32 s{WQ+3}, 0x20000')
    class St: issued = 0; landed = -1
    def vm(t):
        a(t); St.issued += 1; return St.issued - 1
    def wait(n):
        n = max(n, 0)
        a(f's_waitcnt vmcnt({n})'); St.landed = max(St.landed, St.issued - n - 1)
    def wait_for(idx):
        if St.landed < idx: wait(St.issued - idx - 1)
    for t in range(8):
        a(f's_add_u32 m0, s{sLW}, {L_WQ + t*1024}')
        a(f's_mov_b32 s{sOFF}, {t*16*8192}')
        iWQ = vm(f'buffer_load_dwordx4 v{vT1}, {srd(WQ)}, s{sOFF} offen nt lds')
    a(f's_mov_b32 s{XS+2}, 4096')
    a(f's_mov_b32 s{XS+3}, 0x20000')
    a(f's_lshl_b32 s{sOFF}, s{sW}, 8')
    for ks in range(4):
        iWQ = vm(f'buffer_load_dwordx4 {vr(S+4*ks,4)}, v{vT2}, {srd(XS)}, s{sOFF} offen offset:{ks*64}')
    def mk(d, p, off, size):
        a(f's_add_u32 s{d}, s{p}, s{off}')
        a(f's_addc_u32 s{d+1}, s{p+1}, 0')
        a(f's_mov_b32 s{d+2}, {size}')
        a(f's_mov_b32 s{d+3}, 0x20000')
    mk(KB, pBk, 4, 3*16384 + 4096); mk(VB, pBv, 4, 3*16384 + 4096)
    mk(KA, pAk, 3, 15*16384 + 4096); mk(VA, pAv, 3, 15*16384 + 4096)
    for d, p, size in ((WS, pWs, WS_SIZE if not stamps else 0x10100000), (DBG, pDbg, 256), (OUT, pOut, 8192)):
        a(f's_mov_b32 s{d}, s{p}'); a(f's_mov_b32 s{d+1}, s{p+1}')
        a(f's_mov_b32 s{d+2}, {size}'); a(f's_mov_b32 s{d+3}, 0x20000')

    stream = []
    for t in range(4):
        for j in range(4): stream.append(('K', 0, t, j))
    for bt in range(5):
        for t in range(4):
            for j in range(4): stream.append(('V', bt, t, j))
            if bt < 4:
                for j in range(4): stream.append(('K', bt+1, t, j))
    for t in range(8): stream.append(('W', 0, t, 0))
    where = {}
    free = {}
    pos = [0]
    def issue_next():
        n = pos[0]; kind, bt, t, j = stream[n]; pos[0] += 1
        if n >= NSLOT: assert free.get(n - NSLOT), ('slot not free', n, stream[n - NSLOT])
        sl = slot(n)
        if kind == 'W':
            u, r = t >> 2, t & 3
            a(f's_mov_b32 s{sOFF}, {(r*128 + 4*u)*1024}')
            idx = vm(f'buffer_load_dwordx4 {rr(sl,0,3)}, v{vWOo}, {srd(WO)}, s{sOFF} offen nt')
        else:
            tt = t if bt == 0 else (bt-1)*4 + t
            a(f's_mov_b32 s{sOFF}, {tt*16384}')
            if kind == 'K':
                idx = vm(f'buffer_load_dwordx4 {rr(sl,0,3)}, v{vK}, {srd(KB if bt == 0 else KA)}, s{sOFF} offen offset:{j*64} nt')
            else:
                idx = vm(f'buffer_load_dwordx4 {rr(sl,0,3)}, v{vV}, {srd(VB if bt == 0 else VA)}, s{sOFF} offen offset:{j*1024} nt')
        where[(kind, bt, t, j)] = (sl, idx, n)
    while St.issued < D0: issue_next()

    a(f's_and_b32 s3, s{sT1}, 7')
    a(f's_lshr_b32 s4, s2, 6')
    a(f's_lshl_b32 s5, s3, 5')
    a(f's_lshl_b32 s6, s4, 3')
    a(f's_add_u32 s5, s5, s6')
    a(f's_add_u32 s{sSL}, s5, s{sT0}')
    a(f's_lshl_b32 s5, s4, 13')
    a(f's_lshl_b32 s6, s3, 10')
    a(f's_add_u32 s{sQr}, s5, s6')
    a(f's_and_b32 s3, s{sT1}, 3')
    a(f's_bfe_u32 s4, s2, 0x20005')
    a(f's_lshl_b32 s5, s7, 3')
    a(f's_add_u32 s{sCG}, s5, s{sT0}')
    a(f's_lshl_b32 s5, s{sT0}, 2')
    a(f's_add_u32 s5, s5, s4')
    a(f's_lshl_b32 s6, s7, 2')
    a(f's_add_u32 s6, s6, s3')
    a(f's_lshl_b32 s{sT2}, s6, 16')
    a(f's_add_u32 s{sT2}, s{sT2}, {WS_P2}')
    a(f's_lshl_b32 s{sT3}, s5, 11')
    a(f's_add_u32 s{sP2w}, s{sT2}, s{sT3}')
    a(f's_lshl_b32 s{sT3}, s5, 6')
    a(f's_add_u32 s{sP2r}, s{sT2}, s{sT3}')
    a(f's_lshl_b32 s6, s6, 8')
    a(f's_lshl_b32 s{sT3}, s5, 3')
    a(f's_add_u32 s{sOUT}, s6, s{sT3}')
    a(f's_lshl_b32 s5, s{sT0}, 9')
    a(f's_lshl_b32 s6, s{sW}, 5')
    a(f's_add_u32 s5, s5, s6')
    a(f's_add_u32 s5, s5, s4')
    a(f's_lshl_b32 s5, s5, 10')
    a(f's_lshl_b32 s6, s3, 8')
    a(f's_add_u32 s5, s5, s6')
    a(f's_add_u32 s{WO}, s{WO}, s5')
    a(f's_addc_u32 s{WO+1}, s{WO+1}, 0')
    a(f's_sub_u32 s{WO+2}, {4096*1024}, s5')
    a(f's_mov_b32 s{WO+3}, 0x20000')
    a(f'v_lshl_add_u32 v{vWOo}, v{vG16}, 9, v{vI16}')
    a(f'v_lshlrev_b32 v{vT1}, 1, v{vT3}')
    a(f'v_lshl_add_u32 v{vT1}, v{vT0}, 3, v{vT1}')
    a(f's_lshl_b32 s5, s{sCG}, 10')
    a(f's_add_u32 s5, s5, {WS_ML}')
    a(f'v_lshl_add_u32 v{vMLo}, v{vT1}, 5, s5')
    a(f's_lshl_b32 s5, s{sCG}, 15')
    a(f's_lshl_b32 s6, s4, 8')
    a(f's_add_u32 s5, s5, s6')
    a(f's_lshl_b32 s6, s{sW}, 6')
    a(f's_add_u32 s5, s5, s6')
    a(f's_add_u32 s5, s5, {WS_O1}')
    a(f'v_lshl_add_u32 v{vO1o}, v{vT1}, 10, v{vG16}')
    a(f'v_add_u32 v{vO1o}, s5, v{vO1o}')
    a(f's_lshl_b32 s5, s{sW}, 18')
    a(f's_lshl_b32 s6, s{sSL}, 10')
    a(f's_add_u32 s5, s5, s6')
    a(f's_add_u32 s5, s5, {WS_O1}')
    a(f's_lshl_b32 s6, s{sW}, 10')
    a(f's_add_u32 s6, s6, s{sP2w}')
    a(f's_sub_u32 s6, s6, 2048')
    a(f's_cmp_lt_u32 s{sW}, 2')
    a(f's_cselect_b32 s5, s5, s6')
    for k in range(4): a(f'v_mov_b32 v{TM+k}, -1')
    vm(f'buffer_store_dwordx4 {vr(TM,4)}, v{vV}, {srd(WS)}, s5 offen sc1')
    a(f's_lshl_b32 s5, s{sW}, 13')
    a(f's_lshl_b32 s6, s{sSL}, 5')
    a(f's_add_u32 s5, s5, s6')
    a(f's_add_u32 s5, s5, {WS_ML}')
    a(f's_cmp_lt_u32 s{sW}, 2')
    a(f's_cselect_b32 s6, 2, 0')
    a(f'v_mov_b32 v{vT2}, {OOB}')
    a(f'v_cmp_gt_u32 vcc, s6, v{vL}')
    a(f'v_cndmask_b32 v{vT2}, v{vT2}, v{vV}, vcc')
    iCLR = vm(f'buffer_store_dwordx4 {vr(TM,4)}, v{vT2}, {srd(WS)}, s5 offen sc1')
    for hf in range(2):
        lo = 0x0c0c0000 | ((2*hf+1) << 8) | (2*hf)
        hi = ((2*hf+1) << 24) | ((2*hf) << 16) | 0x0c0c
        for x in range(2):
            r = vSEL + 2*hf + x
            a(f'v_mov_b32 v{r}, 0x0c0c0c0c')
            a(f'v_mov_b32 v{vT1}, {lo}')
            a(f'v_cmp_eq_u32 vcc, {2*x}, v{vT3}')
            a(f'v_cndmask_b32 v{r}, v{r}, v{vT1}, vcc')
            a(f'v_mov_b32 v{vT1}, {hi}')
            a(f'v_cmp_eq_u32 vcc, {2*x+1}, v{vT3}')
            a(f'v_cndmask_b32 v{r}, v{r}, v{vT1}, vcc')
    a(f's_mov_b32 s{sC}, {f2u(CSC)}')
    a(f's_mov_b32 s{sFLG}, 0x01010101')
    a(f's_mov_b32 s{sMSK}, 0xffff0000')
    a(f's_lshl_b32 s5, s{sW}, 11')
    a(f'v_lshl_add_u32 v{vLDW}, v{vL}, 5, s5')
    a(f'v_lshlrev_b32 v{vLDH}, 3, v{vT0}')
    a(f'v_lshl_add_u32 v{vLQ}, v{vT0}, 8, v{vG16}')
    a(f'v_add_u32 v{vLQ}, s{sLW}, v{vLQ}')

    xp = [0]
    def sparse(pk, hf, sl, first):
        x = XP + 2*(xp[0] % 4); xp[0] += 1
        a(f'v_perm_b32 v{x}, v{pk}, v{pk}, v{vSEL+2*hf}')
        a(f'v_perm_b32 v{x+1}, v{pk}, v{pk}, v{vSEL+2*hf+1}')
        return x
    def sparse_mfma(x, sl, first):
        for u in range(2):
            c = '0' if first else vr(ACC+4*u, 4)
            a(f'v_mfma_f32_16x16x16_bf16 {vr(ACC+4*u,4)}, {vr(x,2)}, {rr(sl,2*u,2*u+1)}, {c}')
    slow = []
    dyn = {}
    def at_qproj():
        stamp('wq landed')
        a(f'v_lshlrev_b32 v{vT1}, 5, v{vG16}')
        a(f'v_lshl_add_u32 v{vT1}, v{vT3}, 6, v{vT1}')
        a(f'v_add3_u32 v{vT1}, v{vT1}, v{vLDH}, s{sLW}')
        for ks in range(4):
            for ct in range(2):
                for z in range(2):
                    a(f'ds_read_b64_tr_b16 {vr(TM + (ks*2+ct)*4 + 2*z, 2)}, v{vT1} offset:{L_WQ + (32*ks + 4*z)*64 + 32*ct}')
        a('s_waitcnt lgkmcnt(0)')
        for ks in range(4):
            for ct in range(2):
                c = '0' if ks == 0 else vr(ACC+4*ct, 4)
                a(f'v_mfma_f32_16x16x32_bf16 {vr(ACC+4*ct,4)}, {vr(S+4*ks,4)}, {vr(TM+(ks*2+ct)*4,4)}, {c}')
        a(f's_lshl_b32 s5, s{sW}, 9')
        a(f'v_add_u32 v{vT1}, s5, v{vI16}')
        a(f'ds_write_b128 v{vT1}, {vr(ACC,4)} offset:{L_QP}')
        a(f'ds_write_b128 v{vT1}, {vr(ACC+4,4)} offset:{L_QP+256}')
        a('s_waitcnt lgkmcnt(0)')
        a('s_barrier')
        a(f's_cmp_lg_u32 s{sW}, 0')
        a.fence()
        a('s_cbranch_scc1 L_q_skip')
        a(f'v_lshrrev_b32 v{vT1}, 2, v{vG16}')
        a(f'v_lshl_add_u32 v{vT1}, v{vI16}, 1, v{vT1}')
        a(f'v_add_u32 v{vT1}, {L_QP}, v{vT1}')
        a(f'v_add_u32 v{vT2}, 1024, v{vT1}')
        a(f'ds_read2_b32 {vr(TM,2)}, v{vT1} offset0:0 offset1:4')
        a(f'ds_read2_b32 {vr(TM+2,2)}, v{vT1} offset0:128 offset1:132')
        a(f'ds_read2_b32 {vr(TM+4,2)}, v{vT2} offset0:0 offset1:4')
        a(f'ds_read2_b32 {vr(TM+6,2)}, v{vT2} offset0:128 offset1:132')
        a(f'v_lshlrev_b32 v{vT1}, 9, v{vG16}')
        a(f'v_lshrrev_b32 v{vT2}, 2, v{vI16}')
        a(f'v_add_u32 v{vT1}, v{vT1}, v{vT2}')
        a('s_waitcnt lgkmcnt(0)')
        for k in range(2):
            a(f'v_add_f32 v{TM+k}, v{TM+k}, v{TM+2+k}')
            a(f'v_add_f32 v{TM+4+k}, v{TM+4+k}, v{TM+6+k}')
        for k in range(2): a(f'v_add_f32 v{TM+k}, v{TM+k}, v{TM+4+k}')
        a(f'v_cvt_pk_bf16_f32 v{TM}, v{TM}, v{TM+1}')
        a(f'buffer_store_dword v{TM}, v{vT1}, {srd(WS)}, s{sQw} offen sc1')
        a.fence(); a.label('L_q_skip')
        dyn['qstore'] = St.issued
        stamp('q stored')
    def at_flag():
        a(f's_cmp_lg_u32 s{sW}, 0')
        a.fence()
        a('s_cbranch_scc1 L_f_skip')
        a(f'v_mov_b32 v{vT1}, {OOB}')
        a(f'v_cmp_eq_u32 vcc, 0, v{vL}')
        a(f'v_cndmask_b32 v{vT1}, v{vT1}, v{vL}, vcc')
        a(f'v_mov_b32 v{vT2}, 1')
        a(f'buffer_store_byte v{vT2}, v{vT1}, {srd(DBG)}, s2 offen sc1')
        a.fence(); a.label('L_f_skip')
        dyn['flagpos'] = pos[0]
        stamp('flag')
    def at_poll():
        a(f'v_lshlrev_b32 v{vT1}, 2, v{vL}')
        dyn['poll'] = vm(f'buffer_load_dword v{vPOLL}, v{vT1}, {srd(DBG)}, 0 offen sc1')
    def at_pollchk():
        stamp('poll back')
        a(f'v_cmp_ne_u32 vcc, s{sFLG}, v{vPOLL}')
        a('s_nop 0')
        a('s_cbranch_vccnz L_p0_slow')
        a.label('L_p0_ok')
        slow.append(f'''L_p0_slow:
    s_mov_b32 s{sCNT}, {spin}
    v_lshlrev_b32 v{vT1}, 2, v{vL}
L_p0_loop:
    buffer_load_dword v{vPOLL}, v{vT1}, {srd(DBG)}, 0 offen sc1
    s_sub_u32 s{sCNT}, s{sCNT}, 1
    s_cbranch_scc1 L_p0_ok
    s_waitcnt vmcnt(0)
    v_cmp_ne_u32 vcc, s{sFLG}, v{vPOLL}
    s_nop 0
    s_cbranch_vccnz L_p0_loop
    s_branch L_p0_ok''')
        stamp('poll ok')
        vm(f'buffer_load_dwordx4 {vr(TM,4)}, v{vV}, {srd(WS)}, s{sQr} offen sc1')
        a(f's_add_u32 s5, s{sQr}, 32768')
        dyn['qload'] = vm(f'buffer_load_dwordx4 {vr(TM+4,4)}, v{vV}, {srd(WS)}, s5 offen sc1')
    def at_qstage():
        stamp('q back')
        a(f'v_add_u32 v{vT1}, s{sLW}, v{vV}')
        a(f'ds_write_b128 v{vT1}, {vr(TM,4)} offset:{L_WQ}')
        a(f'ds_write_b128 v{vT1}, {vr(TM+4,4)} offset:{L_WQ+1024}')
        a('s_waitcnt lgkmcnt(0)')
        for j in range(4):
            a(f'ds_read_b128 {vr(QB+4*j,4)}, v{vLQ} offset:{L_WQ+1024+64*j}')
        for j in range(4):
            a(f'ds_read_b128 {vr(QA+4*j,4)}, v{vLQ} offset:{L_WQ+64*j}')
        a('s_waitcnt lgkmcnt(0)')
    def at_qk(bt, t):
        def f():
            Q = QB if bt == 0 else QA
            for j in range(4):
                sl, idx, n = where[('K', bt, t, j)]
                c = '0' if j == 0 else vr(S+4*t, 4)
                a(f'v_mfma_f32_16x16x32_bf16 {vr(S+4*t,4)}, {rr(sl,0,3)}, {vr(Q+4*j,4)}, {c}')
                free[n] = True
        return f
    def xrow(reg, tmp, op):
        for sw in ('v_permlane32_swap_b32', 'v_permlane16_swap_b32'):
            a(f'v_mov_b32 v{tmp}, v{reg}')
            a(f'{sw} v{reg}, v{tmp}')
            a(f'{op} v{reg}, v{reg}, v{tmp}')
    def at_sm1(bt):
        def f():
            first = bt in (0, 1)
            a(f'v_max3_f32 v{TM}, v{S}, v{S+1}, v{S+2}')
            a(f'v_max3_f32 v{TM+1}, v{S+3}, v{S+4}, v{S+5}')
            a(f'v_max3_f32 v{TM+2}, v{S+6}, v{S+7}, v{S+8}')
            a(f'v_max3_f32 v{TM+3}, v{S+9}, v{S+10}, v{S+11}')
            a(f'v_max3_f32 v{TM}, v{TM}, v{S+12}, v{S+13}')
            a(f'v_max3_f32 v{TM+1}, v{TM+1}, v{S+14}, v{S+15}')
            a(f'v_max3_f32 v{TM}, v{TM}, v{TM+2}, v{TM+3}')
            if first: a(f'v_max_f32 v{vM}, v{TM}, v{TM+1}')
            else: a(f'v_max3_f32 v{vM}, v{vM}, v{TM}, v{TM+1}')
            xrow(vM, TM, 'v_max_f32')
            if not first: a(f'v_mov_b32 v{vAL}, v{vMC}')
            a(f'v_mul_f32 v{vMC}, s{sC}, v{vM}')
            if not first:
                a(f'v_sub_f32 v{TM}, v{vAL}, v{vMC}')
                a(f'v_exp_f32 v{TM}, v{TM}')
                a(f'v_mul_f32 v{vLS}, v{vLS}, v{TM}')
                if bt != 4:
                    for u in range(2):
                        for r in range(4):
                            a(f'v_mul_f32_dpp v{ACC+4*u+r}, v{TM}, v{ACC+4*u+r} quad_perm:[{r},{r},{r},{r}] {DPPF}')
        return f
    def at_sm2(bt, half):
        def f():
            first = bt in (0, 1)
            rs = range(8*half, 8*half+8)
            for k in rs: a(f'v_fma_f32 v{S+k}, v{S+k}, s{sC}, -v{vMC}')
            for k in rs: a(f'v_exp_f32 v{S+k}, v{S+k}')
            b = S + 8*half
            a(f'v_add_f32 v{TM}, v{b}, v{b+1}')
            a(f'v_add_f32 v{TM+1}, v{b+2}, v{b+3}')
            a(f'v_add_f32 v{TM+2}, v{b+4}, v{b+5}')
            a(f'v_add_f32 v{TM+3}, v{b+6}, v{b+7}')
            a(f'v_add_f32 v{TM}, v{TM}, v{TM+1}')
            a(f'v_add_f32 v{TM+2}, v{TM+2}, v{TM+3}')
            if first and half == 0: a(f'v_add_f32 v{vLS}, v{TM}, v{TM+2}')
            else:
                a(f'v_add_f32 v{TM}, v{TM}, v{TM+2}')
                a(f'v_add_f32 v{vLS}, v{vLS}, v{TM}')
            if bt not in (0, 4):
                for k in range(4): a(f'v_cvt_pk_bf16_f32 v{P+4*half+k}, v{b+2*k}, v{b+2*k+1}')
        return f
    def sum4(base, own):
        a(f'v_lshlrev_b32 v{vT1}, 5, v{vL}')
        ws_ = range(1, 4) if own else range(4)
        for w in ws_:
            for u in range(2):
                a(f'ds_read_b128 {vr(TM+8*w+4*u,4)}, v{vT1} offset:{base + w*2048 + u*16}')
        a('s_waitcnt lgkmcnt(0)')
        src0 = ACC if own else TM
        for k in range(0, 8, 2):
            a(f'v_pk_add_f32 {vr(TM+k,2)}, {vr(src0+k,2)}, {vr(TM+8+k,2)}')
            a(f'v_pk_add_f32 {vr(TM+16+k,2)}, {vr(TM+16+k,2)}, {vr(TM+24+k,2)}')
        for k in range(0, 8, 2):
            a(f'v_pk_add_f32 {vr(TM+k,2)}, {vr(TM+k,2)}, {vr(TM+16+k,2)}')
    def pub_o(branch):
        for k in range(4): a(f'v_cvt_pk_bf16_f32 v{TM+k}, v{TM+2*k}, v{TM+2*k+1}')
        a(f's_lshl_b32 s5, s{sSL}, 10')
        a(f's_add_u32 s5, s5, {WS_O1 + branch*0x40000}')
        a(f'buffer_store_dwordx4 {vr(TM,4)}, v{vV}, {srd(WS)}, s5 offen sc1')
    def at_xch(bt):
        def f():
            lb = L_MLB if bt == 0 else L_MLA
            branch = 1 if bt == 0 else 0
            xrow(vLS, TM, 'v_add_f32')
            a(f'v_mov_b32 v{TM}, v{vMC}')
            a(f'v_mov_b32 v{TM+1}, v{vLS}')
            a(f's_lshl_b32 s5, s{sW}, 5')
            a(f'v_add_u32 v{vT1}, s5, v{vLDH}')
            a(f'ds_write_b64 v{vT1}, {vr(TM,2)} offset:{lb}')
            a('s_waitcnt lgkmcnt(0)')
            a('s_barrier')
            for w in range(4): a(f'ds_read_b64 {vr(TM+2*w,2)}, v{vLDH} offset:{lb+32*w}')
            a('s_waitcnt lgkmcnt(0)')
            a(f'v_max3_f32 v{TM+8}, v{TM}, v{TM+2}, v{TM+4}')
            a(f'v_max_f32 v{TM+8}, v{TM+8}, v{TM+6}')
            a(f'v_sub_f32 v{TM+9}, v{vMC}, v{TM+8}')
            a(f'v_exp_f32 v{TM+9}, v{TM+9}')
            if bt == 4:
                a(f'v_sub_f32 v{TM+10}, v{vAL}, v{TM+8}')
                a(f'v_exp_f32 v{TM+10}, v{TM+10}')
            for k in range(16): a(f'v_mul_f32 v{S+k}, v{S+k}, v{TM+9}')
            for k in range(8): a(f'v_cvt_pk_bf16_f32 v{P+k}, v{S+2*k}, v{S+2*k+1}')
            if bt == 4:
                for u in range(2):
                    for r in range(4):
                        a(f'v_mul_f32_dpp v{ACC+4*u+r}, v{TM+10}, v{ACC+4*u+r} quad_perm:[{r},{r},{r},{r}] {DPPF}')
            a(f's_cmp_lg_u32 s{sW}, 0')
            a.fence()
            a(f's_cbranch_scc1 L_ml{bt}_skip')
            for w in range(4):
                a(f'v_sub_f32 v{TM+2*w}, v{TM+2*w}, v{TM+8}')
            for w in range(4):
                a(f'v_exp_f32 v{TM+2*w}, v{TM+2*w}')
            a(f'v_mul_f32 v{TM+9}, v{TM}, v{TM+1}')
            for w in range(1, 4): a(f'v_fmac_f32 v{TM+9}, v{TM+2*w}, v{TM+2*w+1}')
            a(f'v_cmp_gt_u32 vcc, 4, v{vL}')
            a(f'v_cndmask_b32 v{TM+9}, v{TM+9}, v{TM+8}, vcc')
            a(f'v_lshlrev_b32 v{vT1}, 2, v{vL}')
            a(f'v_mov_b32 v{vT2}, {OOB}')
            a(f'v_cmp_gt_u32 vcc, 8, v{vL}')
            a(f'v_cndmask_b32 v{vT1}, v{vT2}, v{vT1}, vcc')
            a(f's_lshl_b32 s5, s{sSL}, 5')
            a(f's_add_u32 s5, s5, {WS_ML + branch*8192}')
            a(f'buffer_store_dword v{TM+9}, v{vT1}, {srd(WS)}, s5 offen sc1')
            a.fence(); a.label(f'L_ml{bt}_skip')
            if bt == 4:
                a(f's_cmp_lg_u32 s{sW}, 1')
                a.fence()
                a(f's_cbranch_scc1 L_ob_skip')
                sum4(L_ACB, False)
                pub_o(1)
                a.fence(); a.label('L_ob_skip')
        return f
    def at_pv(bt, t):
        def f():
            xs = []
            for r in range(4):
                sl, idx, n = where[('V', bt, t, r)]
                xs.append(sparse(P + 2*t + (r >> 1), r & 1, sl, False))
            for r in range(4):
                sl, idx, n = where[('V', bt, t, r)]
                sparse_mfma(xs[r], sl, bt in (0, 1) and t == 0 and r == 0)
                free[n] = True
        return f
    def at_accb():
        a(f'ds_write_b128 v{vLDW}, {vr(ACC,4)} offset:{L_ACB}')
        a(f'ds_write_b128 v{vLDW}, {vr(ACC+4,4)} offset:{L_ACB+16}')
        stamp('B done')
    kidx = lambda bt, t: (lambda: where[('K', bt, t, 3)][1] if ('K', bt, t, 3) in where else 1 << 30)
    vidx = lambda bt, t: (lambda: where[('V', bt, t, 3)][1] if ('V', bt, t, 3) in where else 1 << 30)
    none = lambda: -1
    atoms = [(at_qproj, lambda: max(iWQ, iCLR), 400),
             (at_flag, lambda: dyn['qstore'], 20),
             (at_poll, lambda: -1 if pos[0] >= dyn['flagpos'] + poll_gap else 1 << 30, 10),
             (at_pollchk, lambda: dyn['poll'], 20),
             (at_qstage, lambda: dyn['qload'], 250)]
    for t in range(4): atoms.append((at_qk(0, t), kidx(0, t), 70))
    for bt in range(5):
        atoms.append((at_sm1(bt), none, 150))
        atoms.append((at_sm2(bt, 0), none, 150))
        atoms.append((at_sm2(bt, 1), none, 150))
        if bt in (0, 4): atoms.append((at_xch(bt), none, 400))
        for t in range(4):
            atoms.append((at_pv(bt, t), vidx(bt, t), 150))
            if bt == 0 and t == 3: atoms.append((at_accb, none, 60))
            if bt < 4: atoms.append((at_qk(bt+1, t), kidx(bt+1, t), 70))
    ai = 0
    log = []
    while pos[0] < len(stream):
        wait(D - 1)
        issue_next()
        spent = 0
        while ai < len(atoms) and spent < budget and atoms[ai][1]() <= St.landed:
            log.append((pos[0], ai)); atoms[ai][0](); spent += atoms[ai][2]; ai += 1
    assert all(free.get(where[('K', 4, t, 3)][2]) for t in range(4)), 'QK not finished at stream end'
    ML, OD = QA, QB
    def ld_ml(f):
        for k in range(4): r = f(f'buffer_load_dwordx4 {vr(ML+4*k,4)}, v{vMLo}, {srd(WS)}, 0 offen offset:{16*k} sc1')
        return r
    def ld_o(f):
        for k in range(2): r = f(f'buffer_load_dwordx4 {vr(OD+4*k,4)}, v{vO1o}, {srd(WS)}, 0 offen offset:{1024*k} sc1')
        return r
    iML = ld_ml(vm); iO = ld_o(vm)
    while ai < len(atoms):
        wait_for(atoms[ai][1]())
        log.append((pos[0], ai)); atoms[ai][0](); ai += 1
    stamp('A pv done')
    a(f'ds_write_b128 v{vLDW}, {vr(ACC,4)} offset:{L_ACA}')
    a(f'ds_write_b128 v{vLDW}, {vr(ACC+4,4)} offset:{L_ACA+16}')
    a('s_waitcnt lgkmcnt(0)')
    a('s_barrier')
    a(f's_cmp_lg_u32 s{sW}, 0')
    a.fence()
    a('s_cbranch_scc1 L_oa_skip')
    sum4(L_ACA, True)
    pub_o(0)
    a.fence(); a.label('L_oa_skip')
    stamp('O pub')
    def chk(base, n, tmp):
        cur = None; k = 0
        a(f'v_max3_u32 v{tmp}, v{base}, v{base+1}, v{base+2}'); k = 3
        while k < n:
            if k + 1 < n: a(f'v_max3_u32 v{tmp}, v{tmp}, v{base+k}, v{base+k+1}'); k += 2
            else: a(f'v_max_u32 v{tmp}, v{tmp}, v{base+k}'); k += 1
        a(f'v_cmp_eq_u32 vcc, -1, v{tmp}')
        a('s_nop 0')
    def poll(name, ld, base, n, first_idx):
        a(f's_mov_b32 s{sCNT}, {spin}')
        if first_idx is not None:
            wait_for(first_idx)
            a('s_branch L_%s_chk' % name)
        a.fence(); a.label(f'L_{name}_loop')
        ld(a)
        a(f's_sub_u32 s{sCNT}, s{sCNT}, 1')
        a(f's_cbranch_scc1 L_{name}_ok')
        a('s_waitcnt vmcnt(0)')
        a.label(f'L_{name}_chk')
        chk(base, n, vT0)
        a(f's_cbranch_vccnz L_{name}_loop')
        a.label(f'L_{name}_ok')
    poll('ml', ld_ml, ML, 16, iML)
    stamp('ML ok')
    F0, F1 = S, S+4
    for r in range(4): a(f'v_max_f32 v{TM+r}, v{ML+r}, v{ML+8+r}')
    for ror in (4, 8):
        for r in range(4): a(f'v_max_f32_dpp v{TM+r}, v{TM+r}, v{TM+r} row_ror:{ror} {DPPF}')
    for r in range(4):
        a(f'v_sub_f32 v{F0+r}, v{ML+r}, v{TM+r}')
        a(f'v_sub_f32 v{F1+r}, v{ML+8+r}, v{TM+r}')
    for r in range(8): a(f'v_exp_f32 v{F0+r}, v{F0+r}')
    for r in range(4): a(f'v_mul_f32 v{TM+r}, v{F0+r}, v{ML+4+r}')
    for r in range(4): a(f'v_fmac_f32 v{TM+r}, v{F1+r}, v{ML+12+r}')
    for ror in (4, 8):
        for r in range(4): a(f'v_add_f32_dpp v{TM+r}, v{TM+r}, v{TM+r} row_ror:{ror} {DPPF}')
    for r in range(4): a(f'v_rcp_f32 v{TM+r}, v{TM+r}')
    for r in range(4):
        a(f'v_mul_f32 v{F0+r}, v{F0+r}, v{TM+r}')
        a(f'v_mul_f32 v{F1+r}, v{F1+r}, v{TM+r}')
    St.landed = -1
    a(f's_mov_b32 s{sCNT}, {spin}')
    a('s_waitcnt vmcnt(0)')
    a('s_branch L_o_chk')
    a.fence(); a.label('L_o_loop')
    ld_o(a)
    a(f's_sub_u32 s{sCNT}, s{sCNT}, 1')
    a('s_cbranch_scc1 L_o_ok')
    a('s_waitcnt vmcnt(0)')
    a.label('L_o_chk')
    chk(OD, 8, vT0)
    a('s_cbranch_vccnz L_o_loop')
    a.label('L_o_ok')
    stamp('O ok')
    for t in range(8):
        d = t >> 1
        if t & 1:
            a(f'v_and_b32 v{TM+t}, s{sMSK}, v{OD+d}')
            a(f'v_and_b32 v{TM+8+t}, s{sMSK}, v{OD+4+d}')
        else:
            a(f'v_lshlrev_b32 v{TM+t}, 16, v{OD+d}')
            a(f'v_lshlrev_b32 v{TM+8+t}, 16, v{OD+4+d}')
    for t in range(8): a(f'v_mul_f32 v{TM+t}, v{TM+t}, v{F0+(t&3)}')
    for t in range(8): a(f'v_fmac_f32 v{TM+t}, v{TM+8+t}, v{F1+(t&3)}')
    for ror in (4, 8):
        for t in range(8): a(f'v_add_f32_dpp v{TM+t}, v{TM+t}, v{TM+t} row_ror:{ror} {DPPF}')
    for k in range(4): a(f'v_cvt_pk_bf16_f32 v{P+k}, v{TM+2*k}, v{TM+2*k+1}')
    for h in range(2):
        xs = [sparse(P + 2*h + (r >> 1), r & 1, None, False) for r in range(4)]
        for r in range(4): sparse_mfma(xs[r], where[('W', 0, 4*h + r, 0)][0], h == 0 and r == 0)
    a(f'ds_write_b128 v{vLDW}, {vr(ACC,4)} offset:{L_OUT}')
    a(f'ds_write_b128 v{vLDW}, {vr(ACC+4,4)} offset:{L_OUT+16}')
    a('s_waitcnt lgkmcnt(0)')
    a('s_barrier')
    a(f's_cmp_lg_u32 s{sW}, 0')
    a('s_cbranch_scc1 L_end')
    sum4(L_OUT, True)
    a(f'v_lshl_add_u32 v{vT1}, v{vI16}, 3, v{vG16}')
    a(f'buffer_store_dwordx4 {vr(TM,4)}, v{vT1}, {srd(WS)}, s{sP2w} offen sc1')
    a(f'buffer_store_dwordx4 {vr(TM+4,4)}, v{vT1}, {srd(WS)}, s{sP2w} offen offset:64 sc1')
    stamp('P2 pub')
    a(f'v_lshrrev_b32 v{vT1}, 2, v{vL}')
    a(f'v_lshlrev_b32 v{vT1}, 11, v{vT1}')
    a(f'v_lshl_add_u32 v{vT1}, v{vLDH}, 1, v{vT1}')
    a(f's_add_u32 s5, s{sP2r}, 32768')
    a(f'v_lshrrev_b32 v{vT2}, 5, v{vL}')
    a(f'v_bfe_u32 v{vT3}, v{vL}, 4, 1')
    a(f'v_lshl_add_u32 v{vT2}, v{vT3}, 1, v{vT2}')
    a(f'v_lshlrev_b32 v{vT2}, 11, v{vT2}')
    a(f'v_lshrrev_b32 v{vT3}, 2, v{vLDH}')
    a(f'v_add_u32 v{vT2}, v{vT2}, v{vT3}')
    a(f'v_and_b32 v{vT3}, 12, v{vL}')
    a(f'v_cmp_eq_u32 vcc, 0, v{vT3}')
    a(f'v_mov_b32 v{vT3}, {OOB}')
    a(f'v_cndmask_b32 v{vT2}, v{vT3}, v{vT2}, vcc')
    def ld_p(f):
        f(f'buffer_load_dwordx4 {vr(S,4)}, v{vT1}, {srd(WS)}, s{sP2r} offen sc1')
        f(f'buffer_load_dwordx4 {vr(S+4,4)}, v{vT1}, {srd(WS)}, s5 offen sc1')
    poll('p2', ld_p, S, 8, None)
    stamp('P2 ok')
    for k in range(4): a(f'v_add_f32 v{S+k}, v{S+k}, v{S+4+k}')
    a(f'v_permlane32_swap_b32 v{S}, v{S+1}')
    a(f'v_permlane32_swap_b32 v{S+2}, v{S+3}')
    a(f'v_add_f32 v{S}, v{S}, v{S+1}')
    a(f'v_add_f32 v{S+2}, v{S+2}, v{S+3}')
    a(f'v_permlane16_swap_b32 v{S}, v{S+2}')
    a(f'v_add_f32 v{S}, v{S}, v{S+2}')
    for ror in (4, 8): a(f'v_add_f32_dpp v{S}, v{S}, v{S} row_ror:{ror} {DPPF}')
    a(f'v_cvt_pk_bf16_f32 v{S}, v{S}, v{S}')
    a(f'buffer_store_short v{S}, v{vT2}, {srd(OUT)}, s{sOUT} offen{outsc}')
    if stamps:
        a('s_waitcnt vmcnt(0)')
        stamp('end')
        a('s_waitcnt lgkmcnt(0)')
        n = len(stl)
        a(f's_mul_i32 s5, s2, {n*8}')
        a(f's_add_u32 s5, s5, {STAMP_OFF}')
        a(f'v_mov_b32 v{vT1}, {OOB}')
        a(f'v_cmp_eq_u32 vcc, 0, v{vL}')
        a(f'v_cndmask_b32 v{vT1}, v{vT1}, v{vL}, vcc')
        for k, (r, nm) in enumerate(stl):
            a(f'v_mov_b32 v{TM}, s{r}'); a(f'v_mov_b32 v{TM+1}, s{r+1}')
            a(f'buffer_store_dwordx2 {vr(TM,2)}, v{vT1}, {srd(WS)}, s5 offen offset:{8*k}')
            a('s_nop 1')
    a.label('L_end')
    a('s_endpgm')
    for s in slow: a.raw(s)
    a.raw(f'''.section .rodata,"a"
.p2align 6
.amdhsa_kernel {KN}_kernel
  .amdhsa_next_free_vgpr 512
  .amdhsa_next_free_sgpr 102
  .amdhsa_accum_offset 256
  .amdhsa_group_segment_fixed_size 0
  .amdhsa_kernarg_size 104
  .amdhsa_user_sgpr_count 2
  .amdhsa_user_sgpr_kernarg_segment_ptr 1
  .amdhsa_system_sgpr_workgroup_id_x 1
.end_amdhsa_kernel''')
    return a.text(), log, [n for _, n in stl]

if __name__ == '__main__':
    import argparse, ast
    ap = argparse.ArgumentParser()
    ap.add_argument('out'); ap.add_argument('kw', nargs='*')
    args = ap.parse_args()
    kw = {}
    for x in args.kw:
        k, v = x.split('=', 1)
        try: kw[k] = ast.literal_eval(v)
        except Exception: kw[k] = v
    t, log, st = gen(**kw)
    open(args.out, 'w').write(t)
    print('atoms at stream pos:', log)
    print('stamps:', list(enumerate(st)))
```

```python
import sys, math, struct
from asmlib import Asm
KN = 'concat_heads__gqa_block_cached__sliding_block_cached__decode'
HDR = open('cdna_kernels/' + KN + '.s.ref').read().split('; Override launch')[0]

WS_Q  = 0x00000
WS_ML = 0x10000
WS_O1 = 0x20000
WS_P2 = 0xA0000
WS_SIZE = 0x120000
STAMP_OFF = 0x10000000
OOB = 0x7ffffff0
L_WQ  = 0
L_QP  = 32768
L_MLB = L_QP + 2048
L_MLA = L_MLB + 128
L_ACB = L_MLA + 128
L_ACA = L_ACB + 8192
L_OUT = L_ACA + 8192
L_END = L_OUT + 8192
CSC = math.log2(math.e) / math.sqrt(128.0)
def f2u(x): return struct.unpack('<I', struct.pack('<f', x))[0]
DPPF = 'row_mask:0xf bank_mask:0xf'

def gen(D=8, D0=16, poll_gap=8, budget=300, stamps=False, spin=100000, outsc='', NSLOT=96, sflag=True, nocomp=False, noclear=False, clrfirst=False):
    a = Asm()
    KA, VA, KB, VB, WQ, WO, XS, WS, DBG, OUT = 8, 12, 16, 20, 24, 28, 32, 36, 40, 44
    sW, sT0, sT1, sT2, sT3, sOFF, sC, sFLG, sCNT, sLW = 48, 49, 50, 51, 52, 53, 54, 55, 56, 57
    sQr, sQw, sSL, sCG, sP2w, sP2r, sOUT, sMSK = 58, 59, 60, 61, 62, 63, 64, 65
    pAx, pAk, pAv, pAwq, pAwo, pBx, pBk, pBv, pBwq, pBwo, pOut, pDbg, pWs = range(68, 94, 2)
    srd = lambda r: f's[{r}:{r+3}]'
    vL, vK, vV, vT0, vT1, vT2, vT3, vPOLL = 0, 1, 2, 3, 4, 5, 6, 7
    vSEL = 8
    vM, vLS, vAL, vMC = 12, 13, 14, 15
    QA, QB, S, P, ACC = 16, 32, 48, 64, 72
    XP = 80
    TM = 88
    vLDW, vLDH, vLQ, vG16, vI16, vWOo = 120, 121, 122, 123, 124, 125
    vMLo, vO1o = 126, 127
    def slot(n):
        n %= NSLOT
        return ('a', n*4) if n < 64 else ('v', 128 + (n-64)*4)
    def rr(sl, lo, hi): return f'{sl[0]}[{sl[1]+lo}:{sl[1]+hi}]'
    vr = lambda r, n: f'v[{r}:{r+n-1}]'
    stl = []
    def stamp(name):
        if stamps:
            r = 100 if not stl else 68 + 2*(len(stl)-1)
            assert r <= 98 or not stl
            a(f's_memrealtime s[{r}:{r+1}]'); stl.append((r, name))

    a.raw(HDR.rstrip())
    a.raw(f'; @launch grid=(256,1,1) block=(256,1,1) lds={L_END}')
    a.raw('.amdgcn_target "amdgcn-amd-amdhsa--gfx950"\n.text')
    a.raw(f'.globl {KN}_kernel\n.p2align 8\n.type {KN}_kernel,@function\n{KN}_kernel:')
    a('s_cmp_ge_u32 s2, 256')
    a('s_cbranch_scc1 L_end')
    stamp('start')
    a('s_load_dwordx16 s[68:83], s[0:1], 0')
    a('s_load_dwordx8 s[84:91], s[0:1], 64')
    a('s_load_dwordx2 s[92:93], s[0:1], 96')
    a(f'v_lshrrev_b32 v{vT0}, 6, v0')
    a(f'v_and_b32 v{vL}, 63, v0')
    a(f'v_readfirstlane_b32 s{sW}, v{vT0}')
    a(f'v_lshrrev_b32 v{vG16}, 4, v{vL}')
    a(f'v_lshlrev_b32 v{vG16}, 4, v{vG16}')
    a(f'v_and_b32 v{vI16}, 15, v{vL}')
    a(f'v_lshlrev_b32 v{vI16}, 4, v{vI16}')
    a(f'v_lshlrev_b32 v{vV}, 4, v{vL}')
    a(f'v_lshrrev_b32 v{vT1}, 2, v{vL}')
    a(f'v_lshlrev_b32 v{vT1}, 13, v{vT1}')
    a(f'v_and_b32 v{vT0}, 3, v{vL}')
    a(f'v_lshl_add_u32 v{vT1}, v{vT0}, 4, v{vT1}')
    a(f'v_lshl_add_u32 v{vT2}, v{vT0}, 10, v{vG16}')
    a(f'v_bfe_u32 v{vT3}, v{vL}, 2, 2')
    a(f'v_lshl_add_u32 v{vK}, v{vT3}, 8, v{vT2}')
    a(f's_and_b32 s{sT0}, s2, 7')
    a(f's_lshr_b32 s{sT1}, s2, 3')
    a(f's_lshl_b32 s{sT2}, s{sT1}, 21')
    a(f's_lshl_b32 s{sT3}, s{sW}, 12')
    a(f's_add_u32 s{sT2}, s{sT2}, s{sT3}')
    a(f's_lshl_b32 s3, s{sT0}, 18')
    a(f's_add_u32 s3, s3, s{sT2}')
    a(f's_lshl_b32 s4, s{sT0}, 16')
    a(f's_add_u32 s4, s4, s{sT2}')
    a(f's_add_u32 s4, s4, {6144*256}')
    a(f's_and_b32 s5, s{sT1}, 15')
    a(f's_lshl_b32 s6, s{sT0}, 4')
    a(f's_add_u32 s5, s5, s6')
    a(f's_lshl_b32 s5, s5, 6')
    a(f's_lshr_b32 s7, s2, 7')
    a(f's_lshl_b32 s6, s7, 15')
    a(f's_add_u32 s{sQw}, s5, s6')
    a(f's_lshl_b32 s6, s{sW}, 20')
    a(f's_add_u32 s5, s5, s6')
    a(f's_lshl_b32 s{sLW}, s{sW}, 13')
    a('s_waitcnt lgkmcnt(0)')
    a('s_cmp_eq_u32 s7, 0')
    a(f's_cselect_b32 s{WQ}, s{pAwq}, s{pBwq}')
    a(f's_cselect_b32 s{WQ+1}, s{pAwq+1}, s{pBwq+1}')
    a(f's_cselect_b32 s{XS}, s{pAx}, s{pBx}')
    a(f's_cselect_b32 s{XS+1}, s{pAx+1}, s{pBx+1}')
    a(f's_cselect_b32 s{WO}, s{pAwo}, s{pBwo}')
    a(f's_cselect_b32 s{WO+1}, s{pAwo+1}, s{pBwo+1}')
    a(f's_add_u32 s{WQ}, s{WQ}, s5')
    a(f's_addc_u32 s{WQ+1}, s{WQ+1}, 0')
    a(f's_sub_u32 s{WQ+2}, {512*8192}, s5')
    a(f's_mov_b32 s{WQ+3}, 0x20000')
    class St: issued = 0; landed = -1
    def vm(t):
        a(t); St.issued += 1; return St.issued - 1
    def wait(n):
        n = max(n, 0)
        a(f's_waitcnt vmcnt({n})'); St.landed = max(St.landed, St.issued - n - 1)
    def wait_for(idx):
        if St.landed < idx: wait(St.issued - idx - 1)
    for t in range(8):
        a(f's_add_u32 m0, s{sLW}, {L_WQ + t*1024}')
        a(f's_mov_b32 s{sOFF}, {t*16*8192}')
        iWQ = vm(f'buffer_load_dwordx4 v{vT1}, {srd(WQ)}, s{sOFF} offen nt lds')
    a(f's_mov_b32 s{XS+2}, 4096')
    a(f's_mov_b32 s{XS+3}, 0x20000')
    a(f's_lshl_b32 s{sOFF}, s{sW}, 8')
    for ks in range(4):
        iWQ = vm(f'buffer_load_dwordx4 {vr(S+4*ks,4)}, v{vT2}, {srd(XS)}, s{sOFF} offen offset:{ks*64}')
    def mk(d, p, off, size):
        a(f's_add_u32 s{d}, s{p}, s{off}')
        a(f's_addc_u32 s{d+1}, s{p+1}, 0')
        a(f's_mov_b32 s{d+2}, {size}')
        a(f's_mov_b32 s{d+3}, 0x20000')
    mk(KB, pBk, 4, 3*16384 + 4096); mk(VB, pBv, 4, 3*16384 + 4096)
    mk(KA, pAk, 3, 15*16384 + 4096); mk(VA, pAv, 3, 15*16384 + 4096)
    for d, p, size in ((WS, pWs, WS_SIZE if not stamps else 0x10100000), (DBG, pDbg, 256), (OUT, pOut, 8192)):
        a(f's_mov_b32 s{d}, s{p}'); a(f's_mov_b32 s{d+1}, s{p+1}')
        a(f's_mov_b32 s{d+2}, {size}'); a(f's_mov_b32 s{d+3}, 0x20000')

    stream = []
    for t in range(4):
        for j in range(4): stream.append(('K', 0, t, j))
    for bt in range(5):
        for t in range(4):
            for j in range(4): stream.append(('V', bt, t, j))
            if bt < 4:
                for j in range(4): stream.append(('K', bt+1, t, j))
    for t in range(8): stream.append(('W', 0, t, 0))
    where = {}
    free = {}
    pos = [0]
    def issue_next():
        n = pos[0]; kind, bt, t, j = stream[n]; pos[0] += 1
        if n >= NSLOT: assert free.get(n - NSLOT), ('slot not free', n, stream[n - NSLOT])
        sl = slot(n)
        if kind == 'W':
            u, r = t >> 2, t & 3
            a(f's_mov_b32 s{sOFF}, {(r*128 + 4*u)*1024}')
            idx = vm(f'buffer_load_dwordx4 {rr(sl,0,3)}, v{vWOo}, {srd(WO)}, s{sOFF} offen nt')
        else:
            tt = t if bt == 0 else (bt-1)*4 + t
            a(f's_mov_b32 s{sOFF}, {tt*16384}')
            if kind == 'K':
                idx = vm(f'buffer_load_dwordx4 {rr(sl,0,3)}, v{vK}, {srd(KB if bt == 0 else KA)}, s{sOFF} offen offset:{j*64} nt')
            else:
                idx = vm(f'buffer_load_dwordx4 {rr(sl,0,3)}, v{vV}, {srd(VB if bt == 0 else VA)}, s{sOFF} offen offset:{j*1024} nt')
        where[(kind, bt, t, j)] = (sl, idx, n)
    while St.issued < D0: issue_next()

    a(f's_and_b32 s3, s{sT1}, 7')
    a(f's_lshr_b32 s4, s2, 6')
    a(f's_lshl_b32 s5, s3, 5')
    a(f's_lshl_b32 s6, s4, 3')
    a(f's_add_u32 s5, s5, s6')
    a(f's_add_u32 s{sSL}, s5, s{sT0}')
    a(f's_lshl_b32 s5, s4, 13')
    a(f's_lshl_b32 s6, s3, 10')
    a(f's_add_u32 s{sQr}, s5, s6')
    a(f's_and_b32 s3, s{sT1}, 3')
    a(f's_bfe_u32 s4, s2, 0x20005')
    a(f's_lshl_b32 s5, s7, 3')
    a(f's_add_u32 s{sCG}, s5, s{sT0}')
    a(f's_lshl_b32 s5, s{sT0}, 2')
    a(f's_add_u32 s5, s5, s4')
    a(f's_lshl_b32 s6, s7, 2')
    a(f's_add_u32 s6, s6, s3')
    a(f's_lshl_b32 s{sT2}, s6, 16')
    a(f's_add_u32 s{sT2}, s{sT2}, {WS_P2}')
    a(f's_lshl_b32 s{sT3}, s5, 11')
    a(f's_add_u32 s{sP2w}, s{sT2}, s{sT3}')
    a(f's_lshl_b32 s{sT3}, s5, 6')
    a(f's_add_u32 s{sP2r}, s{sT2}, s{sT3}')
    a(f's_lshl_b32 s6, s6, 8')
    a(f's_lshl_b32 s{sT3}, s5, 3')
    a(f's_add_u32 s{sOUT}, s6, s{sT3}')
    a(f's_lshl_b32 s5, s{sT0}, 9')
    a(f's_lshl_b32 s6, s{sW}, 5')
    a(f's_add_u32 s5, s5, s6')
    a(f's_add_u32 s5, s5, s4')
    a(f's_lshl_b32 s5, s5, 10')
    a(f's_lshl_b32 s6, s3, 8')
    a(f's_add_u32 s5, s5, s6')
    a(f's_add_u32 s{WO}, s{WO}, s5')
    a(f's_addc_u32 s{WO+1}, s{WO+1}, 0')
    a(f's_sub_u32 s{WO+2}, {4096*1024}, s5')
    a(f's_mov_b32 s{WO+3}, 0x20000')
    a(f'v_lshl_add_u32 v{vWOo}, v{vG16}, 9, v{vI16}')
    a(f'v_lshlrev_b32 v{vT1}, 1, v{vT3}')
    a(f'v_lshl_add_u32 v{vT1}, v{vT0}, 3, v{vT1}')
    a(f's_lshl_b32 s5, s{sCG}, 10')
    a(f's_add_u32 s5, s5, {WS_ML}')
    a(f'v_lshl_add_u32 v{vMLo}, v{vT1}, 5, s5')
    a(f's_lshl_b32 s5, s{sCG}, 15')
    a(f's_lshl_b32 s6, s4, 8')
    a(f's_add_u32 s5, s5, s6')
    a(f's_lshl_b32 s6, s{sW}, 6')
    a(f's_add_u32 s5, s5, s6')
    a(f's_add_u32 s5, s5, {WS_O1}')
    a(f'v_lshl_add_u32 v{vO1o}, v{vT1}, 10, v{vG16}')
    a(f'v_add_u32 v{vO1o}, s5, v{vO1o}')
    a(f's_lshl_b32 s5, s{sW}, 18')
    a(f's_lshl_b32 s6, s{sSL}, 10')
    a(f's_add_u32 s5, s5, s6')
    a(f's_add_u32 s5, s5, {WS_O1}')
    a(f's_lshl_b32 s6, s{sW}, 10')
    a(f's_add_u32 s6, s6, s{sP2w}')
    a(f's_sub_u32 s6, s6, 2048')
    a(f's_cmp_lt_u32 s{sW}, 2')
    a(f's_cselect_b32 s5, s5, s6')
    for k in range(4): a(f'v_mov_b32 v{TM+k}, -1')
    if not noclear: vm(f'buffer_store_dwordx4 {vr(TM,4)}, v{vV}, {srd(WS)}, s5 offen sc1')
    a(f's_lshl_b32 s5, s{sW}, 13')
    a(f's_lshl_b32 s6, s{sSL}, 5')
    a(f's_add_u32 s5, s5, s6')
    a(f's_add_u32 s5, s5, {WS_ML}')
    a(f's_cmp_lt_u32 s{sW}, 2')
    a(f's_cselect_b32 s6, 2, 0')
    a(f'v_mov_b32 v{vT2}, {OOB}')
    a(f'v_cmp_gt_u32 vcc, s6, v{vL}')
    a(f'v_cndmask_b32 v{vT2}, v{vT2}, v{vV}, vcc')
    iCLR = vm(f'buffer_store_dwordx4 {vr(TM,4)}, v{vT2}, {srd(WS)}, s5 offen sc1') if not noclear else -1
    for hf in range(2):
        lo = 0x0c0c0000 | ((2*hf+1) << 8) | (2*hf)
        hi = ((2*hf+1) << 24) | ((2*hf) << 16) | 0x0c0c
        for x in range(2):
            r = vSEL + 2*hf + x
            a(f'v_mov_b32 v{r}, 0x0c0c0c0c')
            a(f'v_mov_b32 v{vT1}, {lo}')
            a(f'v_cmp_eq_u32 vcc, {2*x}, v{vT3}')
            a(f'v_cndmask_b32 v{r}, v{r}, v{vT1}, vcc')
            a(f'v_mov_b32 v{vT1}, {hi}')
            a(f'v_cmp_eq_u32 vcc, {2*x+1}, v{vT3}')
            a(f'v_cndmask_b32 v{r}, v{r}, v{vT1}, vcc')
    a(f's_mov_b32 s{sC}, {f2u(CSC)}')
    a(f's_mov_b32 s{sFLG}, 0x01010101')
    a(f's_mov_b32 s{sMSK}, 0xffff0000')
    a(f's_lshl_b32 s5, s{sW}, 11')
    a(f'v_lshl_add_u32 v{vLDW}, v{vL}, 5, s5')
    a(f'v_lshlrev_b32 v{vLDH}, 3, v{vT0}')
    a(f'v_lshl_add_u32 v{vLQ}, v{vT0}, 8, v{vG16}')
    a(f'v_add_u32 v{vLQ}, s{sLW}, v{vLQ}')

    xp = [0]
    def sparse(pk, hf, sl, first):
        x = XP + 2*(xp[0] % 4); xp[0] += 1
        a(f'v_perm_b32 v{x}, v{pk}, v{pk}, v{vSEL+2*hf}')
        a(f'v_perm_b32 v{x+1}, v{pk}, v{pk}, v{vSEL+2*hf+1}')
        return x
    def sparse_mfma(x, sl, first):
        for u in range(2):
            c = '0' if first else vr(ACC+4*u, 4)
            a(f'v_mfma_f32_16x16x16_bf16 {vr(ACC+4*u,4)}, {vr(x,2)}, {rr(sl,2*u,2*u+1)}, {c}')
    slow = []
    dyn = {}
    def at_qproj():
        stamp('wq landed')
        a(f'v_lshlrev_b32 v{vT1}, 5, v{vG16}')
        a(f'v_lshl_add_u32 v{vT1}, v{vT3}, 6, v{vT1}')
        a(f'v_add3_u32 v{vT1}, v{vT1}, v{vLDH}, s{sLW}')
        for ks in range(4):
            for ct in range(2):
                for z in range(2):
                    a(f'ds_read_b64_tr_b16 {vr(TM + (ks*2+ct)*4 + 2*z, 2)}, v{vT1} offset:{L_WQ + (32*ks + 4*z)*64 + 32*ct}')
        a('s_waitcnt lgkmcnt(0)')
        for ks in range(4):
            for ct in range(2):
                c = '0' if ks == 0 else vr(ACC+4*ct, 4)
                a(f'v_mfma_f32_16x16x32_bf16 {vr(ACC+4*ct,4)}, {vr(S+4*ks,4)}, {vr(TM+(ks*2+ct)*4,4)}, {c}')
        a(f's_lshl_b32 s5, s{sW}, 9')
        a(f'v_add_u32 v{vT1}, s5, v{vI16}')
        a(f'ds_write_b128 v{vT1}, {vr(ACC,4)} offset:{L_QP}')
        a(f'ds_write_b128 v{vT1}, {vr(ACC+4,4)} offset:{L_QP+256}')
        a('s_waitcnt lgkmcnt(0)')
        a('s_barrier')
        a(f's_cmp_lg_u32 s{sW}, 0')
        a.fence()
        a('s_cbranch_scc1 L_q_skip')
        a(f'v_lshrrev_b32 v{vT1}, 2, v{vG16}')
        a(f'v_lshl_add_u32 v{vT1}, v{vI16}, 1, v{vT1}')
        a(f'v_add_u32 v{vT1}, {L_QP}, v{vT1}')
        a(f'v_add_u32 v{vT2}, 1024, v{vT1}')
        a(f'ds_read2_b32 {vr(TM,2)}, v{vT1} offset0:0 offset1:4')
        a(f'ds_read2_b32 {vr(TM+2,2)}, v{vT1} offset0:128 offset1:132')
        a(f'ds_read2_b32 {vr(TM+4,2)}, v{vT2} offset0:0 offset1:4')
        a(f'ds_read2_b32 {vr(TM+6,2)}, v{vT2} offset0:128 offset1:132')
        a(f'v_lshlrev_b32 v{vT1}, 9, v{vG16}')
        a(f'v_lshrrev_b32 v{vT2}, 2, v{vI16}')
        a(f'v_add_u32 v{vT1}, v{vT1}, v{vT2}')
        a('s_waitcnt lgkmcnt(0)')
        for k in range(2):
            a(f'v_add_f32 v{TM+k}, v{TM+k}, v{TM+2+k}')
            a(f'v_add_f32 v{TM+4+k}, v{TM+4+k}, v{TM+6+k}')
        for k in range(2): a(f'v_add_f32 v{TM+k}, v{TM+k}, v{TM+4+k}')
        a(f'v_cvt_pk_bf16_f32 v{TM}, v{TM}, v{TM+1}')
        a(f'buffer_store_dword v{TM}, v{vT1}, {srd(WS)}, s{sQw} offen sc1')
        a.fence(); a.label('L_q_skip')
        dyn['qstore'] = St.issued
        stamp('q stored')
    def at_flag():
        a(f's_cmp_lg_u32 s{sW}, 0')
        a.fence()
        a('s_cbranch_scc1 L_f_skip')
        a(f's_and_b32 s5, s2, 3')
        a(f's_lshl_b32 s5, s5, 6')
        a(f's_mov_b32 s6, 1')
        a(f's_atomic_add s6, s[{DBG}:{DBG+1}], s5')
        a.fence(); a.label('L_f_skip')
        dyn['flagpos'] = pos[0]
        stamp('flag')
    def at_poll():
        a(f'v_lshlrev_b32 v{vT1}, 3, v{vLDH}')
        dyn['poll'] = vm(f'buffer_load_dword v{vPOLL}, v{vT1}, {srd(DBG)}, 0 offen sc1')
    def at_pollchk():
        stamp('poll back')
        a(f'v_cmp_ne_u32 vcc, 64, v{vPOLL}')
        a('s_nop 0')
        a('s_cbranch_vccnz L_p0_slow')
        a.label('L_p0_ok')
        slow.append(f'''L_p0_slow:
    s_mov_b32 s{sCNT}, {spin}
    v_lshlrev_b32 v{vT1}, 3, v{vLDH}
L_p0_loop:
    buffer_load_dword v{vPOLL}, v{vT1}, {srd(DBG)}, 0 offen sc1
    s_sub_u32 s{sCNT}, s{sCNT}, 1
    s_cbranch_scc1 L_p0_ok
    s_waitcnt vmcnt(0)
    v_cmp_ne_u32 vcc, 64, v{vPOLL}
    s_nop 0
    s_cbranch_vccnz L_p0_loop
    s_branch L_p0_ok''')
        stamp('poll ok')
        vm(f'buffer_load_dwordx4 {vr(TM,4)}, v{vV}, {srd(WS)}, s{sQr} offen sc1')
        a(f's_add_u32 s5, s{sQr}, 32768')
        dyn['qload'] = vm(f'buffer_load_dwordx4 {vr(TM+4,4)}, v{vV}, {srd(WS)}, s5 offen sc1')
    def at_qstage():
        stamp('q back')
        a(f'v_add_u32 v{vT1}, s{sLW}, v{vV}')
        a(f'ds_write_b128 v{vT1}, {vr(TM,4)} offset:{L_WQ}')
        a(f'ds_write_b128 v{vT1}, {vr(TM+4,4)} offset:{L_WQ+1024}')
        a('s_waitcnt lgkmcnt(0)')
        for j in range(4):
            a(f'ds_read_b128 {vr(QB+4*j,4)}, v{vLQ} offset:{L_WQ+1024+64*j}')
        for j in range(4):
            a(f'ds_read_b128 {vr(QA+4*j,4)}, v{vLQ} offset:{L_WQ+64*j}')
        a('s_waitcnt lgkmcnt(0)')
    def at_qk(bt, t):
        def f():
            Q = QB if bt == 0 else QA
            for j in range(4):
                sl, idx, n = where[('K', bt, t, j)]
                c = '0' if j == 0 else vr(S+4*t, 4)
                a(f'v_mfma_f32_16x16x32_bf16 {vr(S+4*t,4)}, {rr(sl,0,3)}, {vr(Q+4*j,4)}, {c}')
                free[n] = True
        return f
    def xrow(reg, tmp, op):
        for sw in ('v_permlane32_swap_b32', 'v_permlane16_swap_b32'):
            a(f'v_mov_b32 v{tmp}, v{reg}')
            a(f'{sw} v{reg}, v{tmp}')
            a(f'{op} v{reg}, v{reg}, v{tmp}')
    def at_sm1(bt):
        def f():
            first = bt in (0, 1)
            a(f'v_max3_f32 v{TM}, v{S}, v{S+1}, v{S+2}')
            a(f'v_max3_f32 v{TM+1}, v{S+3}, v{S+4}, v{S+5}')
            a(f'v_max3_f32 v{TM+2}, v{S+6}, v{S+7}, v{S+8}')
            a(f'v_max3_f32 v{TM+3}, v{S+9}, v{S+10}, v{S+11}')
            a(f'v_max3_f32 v{TM}, v{TM}, v{S+12}, v{S+13}')
            a(f'v_max3_f32 v{TM+1}, v{TM+1}, v{S+14}, v{S+15}')
            a(f'v_max3_f32 v{TM}, v{TM}, v{TM+2}, v{TM+3}')
            if first: a(f'v_max_f32 v{vM}, v{TM}, v{TM+1}')
            else: a(f'v_max3_f32 v{vM}, v{vM}, v{TM}, v{TM+1}')
            xrow(vM, TM, 'v_max_f32')
            if not first: a(f'v_mov_b32 v{vAL}, v{vMC}')
            a(f'v_mul_f32 v{vMC}, s{sC}, v{vM}')
            if not first:
                a(f'v_sub_f32 v{TM}, v{vAL}, v{vMC}')
                a(f'v_exp_f32 v{TM}, v{TM}')
                a(f'v_mul_f32 v{vLS}, v{vLS}, v{TM}')
                if bt != 4:
                    for u in range(2):
                        for r in range(4):
                            a(f'v_mul_f32_dpp v{ACC+4*u+r}, v{TM}, v{ACC+4*u+r} quad_perm:[{r},{r},{r},{r}] {DPPF}')
        return f
    def at_sm2(bt, half):
        def f():
            first = bt in (0, 1)
            rs = range(8*half, 8*half+8)
            for k in rs: a(f'v_fma_f32 v{S+k}, v{S+k}, s{sC}, -v{vMC}')
            for k in rs: a(f'v_exp_f32 v{S+k}, v{S+k}')
            b = S + 8*half
            a(f'v_add_f32 v{TM}, v{b}, v{b+1}')
            a(f'v_add_f32 v{TM+1}, v{b+2}, v{b+3}')
            a(f'v_add_f32 v{TM+2}, v{b+4}, v{b+5}')
            a(f'v_add_f32 v{TM+3}, v{b+6}, v{b+7}')
            a(f'v_add_f32 v{TM}, v{TM}, v{TM+1}')
            a(f'v_add_f32 v{TM+2}, v{TM+2}, v{TM+3}')
            if first and half == 0: a(f'v_add_f32 v{vLS}, v{TM}, v{TM+2}')
            else:
                a(f'v_add_f32 v{TM}, v{TM}, v{TM+2}')
                a(f'v_add_f32 v{vLS}, v{vLS}, v{TM}')
            if bt not in (0, 4):
                for k in range(4): a(f'v_cvt_pk_bf16_f32 v{P+4*half+k}, v{b+2*k}, v{b+2*k+1}')
        return f
    def sum4(base, own):
        a(f'v_lshlrev_b32 v{vT1}, 5, v{vL}')
        ws_ = range(1, 4) if own else range(4)
        for w in ws_:
            for u in range(2):
                a(f'ds_read_b128 {vr(TM+8*w+4*u,4)}, v{vT1} offset:{base + w*2048 + u*16}')
        a('s_waitcnt lgkmcnt(0)')
        src0 = ACC if own else TM
        for k in range(0, 8, 2):
            a(f'v_pk_add_f32 {vr(TM+k,2)}, {vr(src0+k,2)}, {vr(TM+8+k,2)}')
            a(f'v_pk_add_f32 {vr(TM+16+k,2)}, {vr(TM+16+k,2)}, {vr(TM+24+k,2)}')
        for k in range(0, 8, 2):
            a(f'v_pk_add_f32 {vr(TM+k,2)}, {vr(TM+k,2)}, {vr(TM+16+k,2)}')
    def pub_o(branch):
        for k in range(4): a(f'v_cvt_pk_bf16_f32 v{TM+k}, v{TM+2*k}, v{TM+2*k+1}')
        a(f's_lshl_b32 s5, s{sSL}, 10')
        a(f's_add_u32 s5, s5, {WS_O1 + branch*0x40000}')
        a(f'buffer_store_dwordx4 {vr(TM,4)}, v{vV}, {srd(WS)}, s5 offen sc1')
    def at_xch(bt):
        def f():
            lb = L_MLB if bt == 0 else L_MLA
            branch = 1 if bt == 0 else 0
            xrow(vLS, TM, 'v_add_f32')
            a(f'v_mov_b32 v{TM}, v{vMC}')
            a(f'v_mov_b32 v{TM+1}, v{vLS}')
            a(f's_lshl_b32 s5, s{sW}, 5')
            a(f'v_add_u32 v{vT1}, s5, v{vLDH}')
            a(f'ds_write_b64 v{vT1}, {vr(TM,2)} offset:{lb}')
            a('s_waitcnt lgkmcnt(0)')
            a('s_barrier')
            for w in range(4): a(f'ds_read_b64 {vr(TM+2*w,2)}, v{vLDH} offset:{lb+32*w}')
            a('s_waitcnt lgkmcnt(0)')
            a(f'v_max3_f32 v{TM+8}, v{TM}, v{TM+2}, v{TM+4}')
            a(f'v_max_f32 v{TM+8}, v{TM+8}, v{TM+6}')
            a(f'v_sub_f32 v{TM+9}, v{vMC}, v{TM+8}')
            a(f'v_exp_f32 v{TM+9}, v{TM+9}')
            if bt == 4:
                a(f'v_sub_f32 v{TM+10}, v{vAL}, v{TM+8}')
                a(f'v_exp_f32 v{TM+10}, v{TM+10}')
            for k in range(16): a(f'v_mul_f32 v{S+k}, v{S+k}, v{TM+9}')
            for k in range(8): a(f'v_cvt_pk_bf16_f32 v{P+k}, v{S+2*k}, v{S+2*k+1}')
            if bt == 4:
                for u in range(2):
                    for r in range(4):
                        a(f'v_mul_f32_dpp v{ACC+4*u+r}, v{TM+10}, v{ACC+4*u+r} quad_perm:[{r},{r},{r},{r}] {DPPF}')
            a(f's_cmp_lg_u32 s{sW}, 0')
            a.fence()
            a(f's_cbranch_scc1 L_ml{bt}_skip')
            for w in range(4):
                a(f'v_sub_f32 v{TM+2*w}, v{TM+2*w}, v{TM+8}')
            for w in range(4):
                a(f'v_exp_f32 v{TM+2*w}, v{TM+2*w}')
            a(f'v_mul_f32 v{TM+9}, v{TM}, v{TM+1}')
            for w in range(1, 4): a(f'v_fmac_f32 v{TM+9}, v{TM+2*w}, v{TM+2*w+1}')
            a(f'v_cmp_gt_u32 vcc, 4, v{vL}')
            a(f'v_cndmask_b32 v{TM+9}, v{TM+9}, v{TM+8}, vcc')
            a(f'v_lshlrev_b32 v{vT1}, 2, v{vL}')
            a(f'v_mov_b32 v{vT2}, {OOB}')
            a(f'v_cmp_gt_u32 vcc, 8, v{vL}')
            a(f'v_cndmask_b32 v{vT1}, v{vT2}, v{vT1}, vcc')
            a(f's_lshl_b32 s5, s{sSL}, 5')
            a(f's_add_u32 s5, s5, {WS_ML + branch*8192}')
            a(f'buffer_store_dword v{TM+9}, v{vT1}, {srd(WS)}, s5 offen sc1')
            a.fence(); a.label(f'L_ml{bt}_skip')
            if bt == 4:
                a(f's_cmp_lg_u32 s{sW}, 1')
                a.fence()
                a(f's_cbranch_scc1 L_ob_skip')
                sum4(L_ACB, False)
                pub_o(1)
                a.fence(); a.label('L_ob_skip')
        return f
    def at_pv(bt, t):
        def f():
            xs = []
            for r in range(4):
                sl, idx, n = where[('V', bt, t, r)]
                xs.append(sparse(P + 2*t + (r >> 1), r & 1, sl, False))
            for r in range(4):
                sl, idx, n = where[('V', bt, t, r)]
                sparse_mfma(xs[r], sl, bt in (0, 1) and t == 0 and r == 0)
                free[n] = True
        return f
    def at_accb():
        a(f'ds_write_b128 v{vLDW}, {vr(ACC,4)} offset:{L_ACB}')
        a(f'ds_write_b128 v{vLDW}, {vr(ACC+4,4)} offset:{L_ACB+16}')
        stamp('B done')
    kidx = lambda bt, t: (lambda: where[('K', bt, t, 3)][1] if ('K', bt, t, 3) in where else 1 << 30)
    vidx = lambda bt, t: (lambda: where[('V', bt, t, 3)][1] if ('V', bt, t, 3) in where else 1 << 30)
    none = lambda: -1
    atoms = [(at_qproj, lambda: max(iWQ, iCLR), 400),
             (at_flag, lambda: dyn['qstore'], 20),
             (at_poll, lambda: -1 if pos[0] >= dyn['flagpos'] + poll_gap else 1 << 30, 10),
             (at_pollchk, lambda: dyn['poll'], 20),
             (at_qstage, lambda: dyn['qload'], 250)]
    for t in range(4): atoms.append((at_qk(0, t), kidx(0, t), 70))
    for bt in range(5):
        atoms.append((at_sm1(bt), none, 150))
        atoms.append((at_sm2(bt, 0), none, 150))
        atoms.append((at_sm2(bt, 1), none, 150))
        if bt in (0, 4): atoms.append((at_xch(bt), none, 400))
        for t in range(4):
            atoms.append((at_pv(bt, t), vidx(bt, t), 150))
            if bt == 0 and t == 3: atoms.append((at_accb, none, 60))
            if bt < 4: atoms.append((at_qk(bt+1, t), kidx(bt+1, t), 70))
    ai = 0
    log = []
    while pos[0] < len(stream):
        wait(D - 1)
        issue_next()
        spent = 0
        while ai < len(atoms) and spent < budget and atoms[ai][1]() <= St.landed:
            log.append((pos[0], ai)); atoms[ai][0](); spent += atoms[ai][2]; ai += 1
    assert all(free.get(where[('K', 4, t, 3)][2]) for t in range(4)), 'QK not finished at stream end'
    ML, OD = QA, QB
    def ld_ml(f):
        for k in range(4): r = f(f'buffer_load_dwordx4 {vr(ML+4*k,4)}, v{vMLo}, {srd(WS)}, 0 offen offset:{16*k} sc1')
        return r
    def ld_o(f):
        for k in range(2): r = f(f'buffer_load_dwordx4 {vr(OD+4*k,4)}, v{vO1o}, {srd(WS)}, 0 offen offset:{1024*k} sc1')
        return r
    iML = ld_ml(vm); iO = ld_o(vm)
    while ai < len(atoms):
        wait_for(atoms[ai][1]())
        log.append((pos[0], ai)); atoms[ai][0](); ai += 1
    stamp('A pv done')
    a(f'ds_write_b128 v{vLDW}, {vr(ACC,4)} offset:{L_ACA}')
    a(f'ds_write_b128 v{vLDW}, {vr(ACC+4,4)} offset:{L_ACA+16}')
    a('s_waitcnt lgkmcnt(0)')
    a('s_barrier')
    a(f's_cmp_lg_u32 s{sW}, 0')
    a.fence()
    a('s_cbranch_scc1 L_oa_skip')
    sum4(L_ACA, True)
    pub_o(0)
    a.fence(); a.label('L_oa_skip')
    stamp('O pub')
    def chk(base, n, tmp):
        cur = None; k = 0
        a(f'v_max3_u32 v{tmp}, v{base}, v{base+1}, v{base+2}'); k = 3
        while k < n:
            if k + 1 < n: a(f'v_max3_u32 v{tmp}, v{tmp}, v{base+k}, v{base+k+1}'); k += 2
            else: a(f'v_max_u32 v{tmp}, v{tmp}, v{base+k}'); k += 1
        a(f'v_cmp_eq_u32 vcc, -1, v{tmp}')
        a('s_nop 0')
    def poll(name, ld, base, n, first_idx):
        a(f's_mov_b32 s{sCNT}, {spin}')
        if first_idx is not None:
            wait_for(first_idx)
            a('s_branch L_%s_chk' % name)
        a.fence(); a.label(f'L_{name}_loop')
        ld(a)
        a(f's_sub_u32 s{sCNT}, s{sCNT}, 1')
        a(f's_cbranch_scc1 L_{name}_ok')
        a('s_waitcnt vmcnt(0)')
        a.label(f'L_{name}_chk')
        chk(base, n, vT0)
        a(f's_cbranch_vccnz L_{name}_loop')
        a.label(f'L_{name}_ok')
    poll('ml', ld_ml, ML, 16, iML)
    stamp('ML ok')
    F0, F1 = S, S+4
    for r in range(4): a(f'v_max_f32 v{TM+r}, v{ML+r}, v{ML+8+r}')
    for ror in (4, 8):
        for r in range(4): a(f'v_max_f32_dpp v{TM+r}, v{TM+r}, v{TM+r} row_ror:{ror} {DPPF}')
    for r in range(4):
        a(f'v_sub_f32 v{F0+r}, v{ML+r}, v{TM+r}')
        a(f'v_sub_f32 v{F1+r}, v{ML+8+r}, v{TM+r}')
    for r in range(8): a(f'v_exp_f32 v{F0+r}, v{F0+r}')
    for r in range(4): a(f'v_mul_f32 v{TM+r}, v{F0+r}, v{ML+4+r}')
    for r in range(4): a(f'v_fmac_f32 v{TM+r}, v{F1+r}, v{ML+12+r}')
    for ror in (4, 8):
        for r in range(4): a(f'v_add_f32_dpp v{TM+r}, v{TM+r}, v{TM+r} row_ror:{ror} {DPPF}')
    for r in range(4): a(f'v_rcp_f32 v{TM+r}, v{TM+r}')
    for r in range(4):
        a(f'v_mul_f32 v{F0+r}, v{F0+r}, v{TM+r}')
        a(f'v_mul_f32 v{F1+r}, v{F1+r}, v{TM+r}')
    St.landed = -1
    a(f's_mov_b32 s{sCNT}, {spin}')
    a('s_waitcnt vmcnt(0)')
    a('s_branch L_o_chk')
    a.fence(); a.label('L_o_loop')
    ld_o(a)
    a(f's_sub_u32 s{sCNT}, s{sCNT}, 1')
    a('s_cbranch_scc1 L_o_ok')
    a('s_waitcnt vmcnt(0)')
    a.label('L_o_chk')
    chk(OD, 8, vT0)
    a('s_cbranch_vccnz L_o_loop')
    a.label('L_o_ok')
    stamp('O ok')
    for t in range(8):
        d = t >> 1
        if t & 1:
            a(f'v_and_b32 v{TM+t}, s{sMSK}, v{OD+d}')
            a(f'v_and_b32 v{TM+8+t}, s{sMSK}, v{OD+4+d}')
        else:
            a(f'v_lshlrev_b32 v{TM+t}, 16, v{OD+d}')
            a(f'v_lshlrev_b32 v{TM+8+t}, 16, v{OD+4+d}')
    for t in range(8): a(f'v_mul_f32 v{TM+t}, v{TM+t}, v{F0+(t&3)}')
    for t in range(8): a(f'v_fmac_f32 v{TM+t}, v{TM+8+t}, v{F1+(t&3)}')
    for ror in (4, 8):
        for t in range(8): a(f'v_add_f32_dpp v{TM+t}, v{TM+t}, v{TM+t} row_ror:{ror} {DPPF}')
    for k in range(4): a(f'v_cvt_pk_bf16_f32 v{P+k}, v{TM+2*k}, v{TM+2*k+1}')
    for h in range(2):
        xs = [sparse(P + 2*h + (r >> 1), r & 1, None, False) for r in range(4)]
        for r in range(4): sparse_mfma(xs[r], where[('W', 0, 4*h + r, 0)][0], h == 0 and r == 0)
    a(f'ds_write_b128 v{vLDW}, {vr(ACC,4)} offset:{L_OUT}')
    a(f'ds_write_b128 v{vLDW}, {vr(ACC+4,4)} offset:{L_OUT+16}')
    a('s_waitcnt lgkmcnt(0)')
    a('s_barrier')
    a(f's_cmp_lg_u32 s{sW}, 0')
    a('s_cbranch_scc1 L_end')
    sum4(L_OUT, True)
    a(f'v_lshl_add_u32 v{vT1}, v{vI16}, 3, v{vG16}')
    a(f'buffer_store_dwordx4 {vr(TM,4)}, v{vT1}, {srd(WS)}, s{sP2w} offen sc1')
    a(f'buffer_store_dwordx4 {vr(TM+4,4)}, v{vT1}, {srd(WS)}, s{sP2w} offen offset:64 sc1')
    stamp('P2 pub')
    a(f'v_lshrrev_b32 v{vT1}, 2, v{vL}')
    a(f'v_lshlrev_b32 v{vT1}, 11, v{vT1}')
    a(f'v_lshl_add_u32 v{vT1}, v{vLDH}, 1, v{vT1}')
    a(f's_add_u32 s5, s{sP2r}, 32768')
    a(f'v_lshrrev_b32 v{vT2}, 5, v{vL}')
    a(f'v_bfe_u32 v{vT3}, v{vL}, 4, 1')
    a(f'v_lshl_add_u32 v{vT2}, v{vT3}, 1, v{vT2}')
    a(f'v_lshlrev_b32 v{vT2}, 11, v{vT2}')
    a(f'v_lshrrev_b32 v{vT3}, 2, v{vLDH}')
    a(f'v_add_u32 v{vT2}, v{vT2}, v{vT3}')
    a(f'v_and_b32 v{vT3}, 12, v{vL}')
    a(f'v_cmp_eq_u32 vcc, 0, v{vT3}')
    a(f'v_mov_b32 v{vT3}, {OOB}')
    a(f'v_cndmask_b32 v{vT2}, v{vT3}, v{vT2}, vcc')
    def ld_p(f):
        f(f'buffer_load_dwordx4 {vr(S,4)}, v{vT1}, {srd(WS)}, s{sP2r} offen sc1')
        f(f'buffer_load_dwordx4 {vr(S+4,4)}, v{vT1}, {srd(WS)}, s5 offen sc1')
    poll('p2', ld_p, S, 8, None)
    stamp('P2 ok')
    for k in range(4): a(f'v_add_f32 v{S+k}, v{S+k}, v{S+4+k}')
    a(f'v_permlane32_swap_b32 v{S}, v{S+1}')
    a(f'v_permlane32_swap_b32 v{S+2}, v{S+3}')
    a(f'v_add_f32 v{S}, v{S}, v{S+1}')
    a(f'v_add_f32 v{S+2}, v{S+2}, v{S+3}')
    a(f'v_permlane16_swap_b32 v{S}, v{S+2}')
    a(f'v_add_f32 v{S}, v{S}, v{S+2}')
    for ror in (4, 8): a(f'v_add_f32_dpp v{S}, v{S}, v{S} row_ror:{ror} {DPPF}')
    a(f'v_cvt_pk_bf16_f32 v{S}, v{S}, v{S}')
    a(f'buffer_store_short v{S}, v{vT2}, {srd(OUT)}, s{sOUT} offen{outsc}')
    if stamps:
        a('s_waitcnt vmcnt(0)')
        stamp('end')
        a('s_waitcnt lgkmcnt(0)')
        n = len(stl)
        a(f's_mul_i32 s5, s2, {n*8}')
        a(f's_add_u32 s5, s5, {STAMP_OFF}')
        a(f'v_mov_b32 v{vT1}, {OOB}')
        a(f'v_cmp_eq_u32 vcc, 0, v{vL}')
        a(f'v_cndmask_b32 v{vT1}, v{vT1}, v{vL}, vcc')
        for k, (r, nm) in enumerate(stl):
            a(f'v_mov_b32 v{TM}, s{r}'); a(f'v_mov_b32 v{TM+1}, s{r+1}')
            a(f'buffer_store_dwordx2 {vr(TM,2)}, v{vT1}, {srd(WS)}, s5 offen offset:{8*k}')
            a('s_nop 1')
    a.label('L_end')
    a('s_endpgm')
    for s in slow: a.raw(s)
    a.raw(f'''.section .rodata,"a"
.p2align 6
.amdhsa_kernel {KN}_kernel
  .amdhsa_next_free_vgpr 512
  .amdhsa_next_free_sgpr 102
  .amdhsa_accum_offset 256
  .amdhsa_group_segment_fixed_size 0
  .amdhsa_kernarg_size 104
  .amdhsa_user_sgpr_count 2
  .amdhsa_user_sgpr_kernarg_segment_ptr 1
  .amdhsa_system_sgpr_workgroup_id_x 1
.end_amdhsa_kernel''')
    return a.text(), log, [n for _, n in stl]

if __name__ == '__main__':
    import argparse, ast
    ap = argparse.ArgumentParser()
    ap.add_argument('out'); ap.add_argument('kw', nargs='*')
    args = ap.parse_args()
    kw = {}
    for x in args.kw:
        k, v = x.split('=', 1)
        try: kw[k] = ast.literal_eval(v)
        except Exception: kw[k] = v
    t, log, st = gen(**kw)
    open(args.out, 'w').write(t)
    print('atoms at stream pos:', log)
    print('stamps:', list(enumerate(st)))
```

```python
import sys, math, struct
from asmlib import Asm
KN = 'concat_heads__gqa_block_cached__sliding_block_cached__decode'
HDR = open('cdna_kernels/' + KN + '.s.ref').read().split('; Override launch')[0]

WS_Q  = 0x00000
WS_ML = 0x10000
WS_O1 = 0x20000
WS_P2 = 0xA0000
WS_SIZE = 0x120000
STAMP_OFF = 0x10000000
OOB = 0x7ffffff0
L_WQ  = 0
L_QP  = 32768
L_MLB = L_QP + 2048
L_MLA = L_MLB + 128
L_ACB = L_MLA + 128
L_ACA = L_ACB + 8192
L_OUT = L_ACA + 8192
L_END = L_OUT + 8192
CSC = math.log2(math.e) / math.sqrt(128.0)
def f2u(x): return struct.unpack('<I', struct.pack('<f', x))[0]
DPPF = 'row_mask:0xf bank_mask:0xf'

def gen(D=8, D0=16, poll_gap=8, budget=300, stamps=False, spin=100000, outsc='', NSLOT=96, sflag=True, nocomp=False, noclear=False, clrfirst=False, amp=None):
    a = Asm()
    KA, VA, KB, VB, WQ, WO, XS, WS, DBG, OUT = 8, 12, 16, 20, 24, 28, 32, 36, 40, 44
    sW, sT0, sT1, sT2, sT3, sOFF, sC, sFLG, sCNT, sLW = 48, 49, 50, 51, 52, 53, 54, 55, 56, 57
    sQr, sQw, sSL, sCG, sP2w, sP2r, sOUT, sMSK = 58, 59, 60, 61, 62, 63, 64, 65
    pAx, pAk, pAv, pAwq, pAwo, pBx, pBk, pBv, pBwq, pBwo, pOut, pDbg, pWs = range(68, 94, 2)
    srd = lambda r: f's[{r}:{r+3}]'
    vL, vK, vV, vT0, vT1, vT2, vT3, vPOLL = 0, 1, 2, 3, 4, 5, 6, 7
    vSEL = 8
    vM, vLS, vAL, vMC = 12, 13, 14, 15
    QA, QB, S, P, ACC = 16, 32, 48, 64, 72
    XP = 80
    TM = 88
    vLDW, vLDH, vLQ, vG16, vI16, vWOo = 120, 121, 122, 123, 124, 125
    vMLo, vO1o = 126, 127
    def slot(n):
        n %= NSLOT
        return ('a', n*4) if n < 64 else ('v', 128 + (n-64)*4)
    def rr(sl, lo, hi): return f'{sl[0]}[{sl[1]+lo}:{sl[1]+hi}]'
    vr = lambda r, n: f'v[{r}:{r+n-1}]'
    stl = []
    def stamp(name):
        if stamps:
            r = 100 if not stl else 68 + 2*(len(stl)-1)
            assert r <= 98 or not stl
            a(f's_memrealtime s[{r}:{r+1}]'); stl.append((r, name))

    a.raw(HDR.rstrip())
    a.raw(f'; @launch grid=(256,1,1) block=(256,1,1) lds={L_END}')
    a.raw('.amdgcn_target "amdgcn-amd-amdhsa--gfx950"\n.text')
    a.raw(f'.globl {KN}_kernel\n.p2align 8\n.type {KN}_kernel,@function\n{KN}_kernel:')
    a('s_cmp_ge_u32 s2, 256')
    a('s_cbranch_scc1 L_end')
    stamp('start')
    a('s_load_dwordx16 s[68:83], s[0:1], 0')
    a('s_load_dwordx8 s[84:91], s[0:1], 64')
    a('s_load_dwordx2 s[92:93], s[0:1], 96')
    a(f'v_lshrrev_b32 v{vT0}, 6, v0')
    a(f'v_and_b32 v{vL}, 63, v0')
    a(f'v_readfirstlane_b32 s{sW}, v{vT0}')
    a(f'v_lshrrev_b32 v{vG16}, 4, v{vL}')
    a(f'v_lshlrev_b32 v{vG16}, 4, v{vG16}')
    a(f'v_and_b32 v{vI16}, 15, v{vL}')
    a(f'v_lshlrev_b32 v{vI16}, 4, v{vI16}')
    a(f'v_lshlrev_b32 v{vV}, 4, v{vL}')
    a(f'v_lshrrev_b32 v{vT1}, 2, v{vL}')
    a(f'v_lshlrev_b32 v{vT1}, 13, v{vT1}')
    a(f'v_and_b32 v{vT0}, 3, v{vL}')
    a(f'v_lshl_add_u32 v{vT1}, v{vT0}, 4, v{vT1}')
    a(f'v_lshl_add_u32 v{vT2}, v{vT0}, 10, v{vG16}')
    a(f'v_bfe_u32 v{vT3}, v{vL}, 2, 2')
    a(f'v_lshl_add_u32 v{vK}, v{vT3}, 8, v{vT2}')
    a(f's_and_b32 s{sT0}, s2, 7')
    a(f's_lshr_b32 s{sT1}, s2, 3')
    a(f's_lshl_b32 s{sT2}, s{sT1}, 21')
    a(f's_lshl_b32 s{sT3}, s{sW}, 12')
    a(f's_add_u32 s{sT2}, s{sT2}, s{sT3}')
    a(f's_lshl_b32 s3, s{sT0}, 18')
    a(f's_add_u32 s3, s3, s{sT2}')
    a(f's_lshl_b32 s4, s{sT0}, 16')
    a(f's_add_u32 s4, s4, s{sT2}')
    a(f's_add_u32 s4, s4, {6144*256}')
    a(f's_and_b32 s5, s{sT1}, 15')
    a(f's_lshl_b32 s6, s{sT0}, 4')
    a(f's_add_u32 s5, s5, s6')
    a(f's_lshl_b32 s5, s5, 6')
    a(f's_lshr_b32 s7, s2, 7')
    a(f's_lshl_b32 s6, s7, 15')
    a(f's_add_u32 s{sQw}, s5, s6')
    a(f's_lshl_b32 s6, s{sW}, 20')
    a(f's_add_u32 s5, s5, s6')
    a(f's_lshl_b32 s{sLW}, s{sW}, 13')
    a('s_waitcnt lgkmcnt(0)')
    a('s_cmp_eq_u32 s7, 0')
    a(f's_cselect_b32 s{WQ}, s{pAwq}, s{pBwq}')
    a(f's_cselect_b32 s{WQ+1}, s{pAwq+1}, s{pBwq+1}')
    a(f's_cselect_b32 s{XS}, s{pAx}, s{pBx}')
    a(f's_cselect_b32 s{XS+1}, s{pAx+1}, s{pBx+1}')
    a(f's_cselect_b32 s{WO}, s{pAwo}, s{pBwo}')
    a(f's_cselect_b32 s{WO+1}, s{pAwo+1}, s{pBwo+1}')
    a(f's_add_u32 s{WQ}, s{WQ}, s5')
    a(f's_addc_u32 s{WQ+1}, s{WQ+1}, 0')
    a(f's_sub_u32 s{WQ+2}, {512*8192}, s5')
    a(f's_mov_b32 s{WQ+3}, 0x20000')
    class St: issued = 0; landed = -1
    def vm(t):
        a(t); St.issued += 1; return St.issued - 1
    def wait(n):
        n = max(n, 0)
        a(f's_waitcnt vmcnt({n})'); St.landed = max(St.landed, St.issued - n - 1)
    def wait_for(idx):
        if St.landed < idx: wait(St.issued - idx - 1)
    for t in range(8):
        a(f's_add_u32 m0, s{sLW}, {L_WQ + t*1024}')
        a(f's_mov_b32 s{sOFF}, {t*16*8192}')
        iWQ = vm(f'buffer_load_dwordx4 v{vT1}, {srd(WQ)}, s{sOFF} offen nt lds')
    a(f's_mov_b32 s{XS+2}, 4096')
    a(f's_mov_b32 s{XS+3}, 0x20000')
    a(f's_lshl_b32 s{sOFF}, s{sW}, 8')
    for ks in range(4):
        iWQ = vm(f'buffer_load_dwordx4 {vr(S+4*ks,4)}, v{vT2}, {srd(XS)}, s{sOFF} offen offset:{ks*64}')
    def mk(d, p, off, size):
        a(f's_add_u32 s{d}, s{p}, s{off}')
        a(f's_addc_u32 s{d+1}, s{p+1}, 0')
        a(f's_mov_b32 s{d+2}, {size}')
        a(f's_mov_b32 s{d+3}, 0x20000')
    mk(KB, pBk, 4, 3*16384 + 4096); mk(VB, pBv, 4, 3*16384 + 4096)
    mk(KA, pAk, 3, 15*16384 + 4096); mk(VA, pAv, 3, 15*16384 + 4096)
    for d, p, size in ((WS, pWs, WS_SIZE if not stamps else 0x10100000), (DBG, pDbg, 256), (OUT, pOut, 8192)):
        a(f's_mov_b32 s{d}, s{p}'); a(f's_mov_b32 s{d+1}, s{p+1}')
        a(f's_mov_b32 s{d+2}, {size}'); a(f's_mov_b32 s{d+3}, 0x20000')

    stream = []
    for t in range(4):
        for j in range(4): stream.append(('K', 0, t, j))
    for bt in range(5):
        for t in range(4):
            for j in range(4): stream.append(('V', bt, t, j))
            if bt < 4:
                for j in range(4): stream.append(('K', bt+1, t, j))
    for t in range(8): stream.append(('W', 0, t, 0))
    where = {}
    free = {}
    pos = [0]
    def issue_next():
        n = pos[0]; kind, bt, t, j = stream[n]; pos[0] += 1
        if n >= NSLOT: assert free.get(n - NSLOT), ('slot not free', n, stream[n - NSLOT])
        sl = slot(n)
        if kind == 'W':
            u, r = t >> 2, t & 3
            a(f's_mov_b32 s{sOFF}, {(r*128 + 4*u)*1024}')
            idx = vm(f'buffer_load_dwordx4 {rr(sl,0,3)}, v{vWOo}, {srd(WO)}, s{sOFF} offen nt')
        else:
            tt = t if bt == 0 else (bt-1)*4 + t
            a(f's_mov_b32 s{sOFF}, {tt*16384}')
            if kind == 'K':
                idx = vm(f'buffer_load_dwordx4 {rr(sl,0,3)}, v{vK}, {srd(KB if bt == 0 else KA)}, s{sOFF} offen offset:{j*64} nt')
            else:
                idx = vm(f'buffer_load_dwordx4 {rr(sl,0,3)}, v{vV}, {srd(VB if bt == 0 else VA)}, s{sOFF} offen offset:{j*1024} nt')
        where[(kind, bt, t, j)] = (sl, idx, n)
    while St.issued < D0: issue_next()

    a(f's_and_b32 s3, s{sT1}, 7')
    a(f's_lshr_b32 s4, s2, 6')
    a(f's_lshl_b32 s5, s3, 5')
    a(f's_lshl_b32 s6, s4, 3')
    a(f's_add_u32 s5, s5, s6')
    a(f's_add_u32 s{sSL}, s5, s{sT0}')
    a(f's_lshl_b32 s5, s4, 13')
    a(f's_lshl_b32 s6, s3, 10')
    a(f's_add_u32 s{sQr}, s5, s6')
    a(f's_and_b32 s3, s{sT1}, 3')
    a(f's_bfe_u32 s4, s2, 0x20005')
    a(f's_lshl_b32 s5, s7, 3')
    a(f's_add_u32 s{sCG}, s5, s{sT0}')
    a(f's_lshl_b32 s5, s{sT0}, 2')
    a(f's_add_u32 s5, s5, s4')
    a(f's_lshl_b32 s6, s7, 2')
    a(f's_add_u32 s6, s6, s3')
    a(f's_lshl_b32 s{sT2}, s6, 16')
    a(f's_add_u32 s{sT2}, s{sT2}, {WS_P2}')
    a(f's_lshl_b32 s{sT3}, s5, 11')
    a(f's_add_u32 s{sP2w}, s{sT2}, s{sT3}')
    a(f's_lshl_b32 s{sT3}, s5, 6')
    a(f's_add_u32 s{sP2r}, s{sT2}, s{sT3}')
    a(f's_lshl_b32 s6, s6, 8')
    a(f's_lshl_b32 s{sT3}, s5, 3')
    a(f's_add_u32 s{sOUT}, s6, s{sT3}')
    a(f's_lshl_b32 s5, s{sT0}, 9')
    a(f's_lshl_b32 s6, s{sW}, 5')
    a(f's_add_u32 s5, s5, s6')
    a(f's_add_u32 s5, s5, s4')
    a(f's_lshl_b32 s5, s5, 10')
    a(f's_lshl_b32 s6, s3, 8')
    a(f's_add_u32 s5, s5, s6')
    a(f's_add_u32 s{WO}, s{WO}, s5')
    a(f's_addc_u32 s{WO+1}, s{WO+1}, 0')
    a(f's_sub_u32 s{WO+2}, {4096*1024}, s5')
    a(f's_mov_b32 s{WO+3}, 0x20000')
    a(f'v_lshl_add_u32 v{vWOo}, v{vG16}, 9, v{vI16}')
    a(f'v_lshlrev_b32 v{vT1}, 1, v{vT3}')
    a(f'v_lshl_add_u32 v{vT1}, v{vT0}, 3, v{vT1}')
    a(f's_lshl_b32 s5, s{sCG}, 10')
    a(f's_add_u32 s5, s5, {WS_ML}')
    a(f'v_lshl_add_u32 v{vMLo}, v{vT1}, 5, s5')
    a(f's_lshl_b32 s5, s{sCG}, 15')
    a(f's_lshl_b32 s6, s4, 8')
    a(f's_add_u32 s5, s5, s6')
    a(f's_lshl_b32 s6, s{sW}, 6')
    a(f's_add_u32 s5, s5, s6')
    a(f's_add_u32 s5, s5, {WS_O1}')
    a(f'v_lshl_add_u32 v{vO1o}, v{vT1}, 10, v{vG16}')
    a(f'v_add_u32 v{vO1o}, s5, v{vO1o}')
    a(f's_lshl_b32 s5, s{sW}, 18')
    a(f's_lshl_b32 s6, s{sSL}, 10')
    a(f's_add_u32 s5, s5, s6')
    a(f's_add_u32 s5, s5, {WS_O1}')
    a(f's_lshl_b32 s6, s{sW}, 10')
    a(f's_add_u32 s6, s6, s{sP2w}')
    a(f's_sub_u32 s6, s6, 2048')
    a(f's_cmp_lt_u32 s{sW}, 2')
    a(f's_cselect_b32 s5, s5, s6')
    for k in range(4): a(f'v_mov_b32 v{TM+k}, -1')
    if not noclear: vm(f'buffer_store_dwordx4 {vr(TM,4)}, v{vV}, {srd(WS)}, s5 offen sc1')
    a(f's_lshl_b32 s5, s{sW}, 13')
    a(f's_lshl_b32 s6, s{sSL}, 5')
    a(f's_add_u32 s5, s5, s6')
    a(f's_add_u32 s5, s5, {WS_ML}')
    a(f's_cmp_lt_u32 s{sW}, 2')
    a(f's_cselect_b32 s6, 2, 0')
    a(f'v_mov_b32 v{vT2}, {OOB}')
    a(f'v_cmp_gt_u32 vcc, s6, v{vL}')
    a(f'v_cndmask_b32 v{vT2}, v{vT2}, v{vV}, vcc')
    iCLR = vm(f'buffer_store_dwordx4 {vr(TM,4)}, v{vT2}, {srd(WS)}, s5 offen sc1') if not noclear else -1
    for hf in range(2):
        lo = 0x0c0c0000 | ((2*hf+1) << 8) | (2*hf)
        hi = ((2*hf+1) << 24) | ((2*hf) << 16) | 0x0c0c
        for x in range(2):
            r = vSEL + 2*hf + x
            a(f'v_mov_b32 v{r}, 0x0c0c0c0c')
            a(f'v_mov_b32 v{vT1}, {lo}')
            a(f'v_cmp_eq_u32 vcc, {2*x}, v{vT3}')
            a(f'v_cndmask_b32 v{r}, v{r}, v{vT1}, vcc')
            a(f'v_mov_b32 v{vT1}, {hi}')
            a(f'v_cmp_eq_u32 vcc, {2*x+1}, v{vT3}')
            a(f'v_cndmask_b32 v{r}, v{r}, v{vT1}, vcc')
    a(f's_mov_b32 s{sC}, {f2u(CSC)}')
    a(f's_mov_b32 s{sFLG}, 0x01010101')
    a(f's_mov_b32 s{sMSK}, 0xffff0000')
    a(f's_lshl_b32 s5, s{sW}, 11')
    a(f'v_lshl_add_u32 v{vLDW}, v{vL}, 5, s5')
    a(f'v_lshlrev_b32 v{vLDH}, 3, v{vT0}')
    a(f'v_lshl_add_u32 v{vLQ}, v{vT0}, 8, v{vG16}')
    a(f'v_add_u32 v{vLQ}, s{sLW}, v{vLQ}')

    xp = [0]
    def sparse(pk, hf, sl, first):
        x = XP + 2*(xp[0] % 4); xp[0] += 1
        a(f'v_perm_b32 v{x}, v{pk}, v{pk}, v{vSEL+2*hf}')
        a(f'v_perm_b32 v{x+1}, v{pk}, v{pk}, v{vSEL+2*hf+1}')
        return x
    def sparse_mfma(x, sl, first):
        for u in range(2):
            c = '0' if first else vr(ACC+4*u, 4)
            a(f'v_mfma_f32_16x16x16_bf16 {vr(ACC+4*u,4)}, {vr(x,2)}, {rr(sl,2*u,2*u+1)}, {c}')
    slow = []
    dyn = {}
    def at_qproj():
        stamp('wq landed')
        a(f'v_lshlrev_b32 v{vT1}, 5, v{vG16}')
        a(f'v_lshl_add_u32 v{vT1}, v{vT3}, 6, v{vT1}')
        a(f'v_add3_u32 v{vT1}, v{vT1}, v{vLDH}, s{sLW}')
        for ks in range(4):
            for ct in range(2):
                for z in range(2):
                    a(f'ds_read_b64_tr_b16 {vr(TM + (ks*2+ct)*4 + 2*z, 2)}, v{vT1} offset:{L_WQ + (32*ks + 4*z)*64 + 32*ct}')
        a('s_waitcnt lgkmcnt(0)')
        for ks in range(4):
            for ct in range(2):
                c = '0' if ks == 0 else vr(ACC+4*ct, 4)
                a(f'v_mfma_f32_16x16x32_bf16 {vr(ACC+4*ct,4)}, {vr(S+4*ks,4)}, {vr(TM+(ks*2+ct)*4,4)}, {c}')
        a(f's_lshl_b32 s5, s{sW}, 9')
        a(f'v_add_u32 v{vT1}, s5, v{vI16}')
        a(f'ds_write_b128 v{vT1}, {vr(ACC,4)} offset:{L_QP}')
        a(f'ds_write_b128 v{vT1}, {vr(ACC+4,4)} offset:{L_QP+256}')
        a('s_waitcnt lgkmcnt(0)')
        a('s_barrier')
        a(f's_cmp_lg_u32 s{sW}, 0')
        a.fence()
        a('s_cbranch_scc1 L_q_skip')
        a(f'v_lshrrev_b32 v{vT1}, 2, v{vG16}')
        a(f'v_lshl_add_u32 v{vT1}, v{vI16}, 1, v{vT1}')
        a(f'v_add_u32 v{vT1}, {L_QP}, v{vT1}')
        a(f'v_add_u32 v{vT2}, 1024, v{vT1}')
        a(f'ds_read2_b32 {vr(TM,2)}, v{vT1} offset0:0 offset1:4')
        a(f'ds_read2_b32 {vr(TM+2,2)}, v{vT1} offset0:128 offset1:132')
        a(f'ds_read2_b32 {vr(TM+4,2)}, v{vT2} offset0:0 offset1:4')
        a(f'ds_read2_b32 {vr(TM+6,2)}, v{vT2} offset0:128 offset1:132')
        a(f'v_lshlrev_b32 v{vT1}, 9, v{vG16}')
        a(f'v_lshrrev_b32 v{vT2}, 2, v{vI16}')
        a(f'v_add_u32 v{vT1}, v{vT1}, v{vT2}')
        a('s_waitcnt lgkmcnt(0)')
        for k in range(2):
            a(f'v_add_f32 v{TM+k}, v{TM+k}, v{TM+2+k}')
            a(f'v_add_f32 v{TM+4+k}, v{TM+4+k}, v{TM+6+k}')
        for k in range(2): a(f'v_add_f32 v{TM+k}, v{TM+k}, v{TM+4+k}')
        a(f'v_cvt_pk_bf16_f32 v{TM}, v{TM}, v{TM+1}')
        a(f'buffer_store_dword v{TM}, v{vT1}, {srd(WS)}, s{sQw} offen sc1')
        a.fence(); a.label('L_q_skip')
        dyn['qstore'] = St.issued
        stamp('q stored')
    def at_flag():
        a(f's_cmp_lg_u32 s{sW}, 0')
        a.fence()
        a('s_cbranch_scc1 L_f_skip')
        a(f's_and_b32 s5, s2, 3')
        a(f's_lshl_b32 s5, s5, 6')
        a(f's_mov_b32 s6, 1')
        a(f's_atomic_add s6, s[{DBG}:{DBG+1}], s5')
        a.fence(); a.label('L_f_skip')
        dyn['flagpos'] = pos[0]
        stamp('flag')
    def at_poll():
        a(f'v_lshlrev_b32 v{vT1}, 3, v{vLDH}')
        dyn['poll'] = vm(f'buffer_load_dword v{vPOLL}, v{vT1}, {srd(DBG)}, 0 offen sc1')
    def at_pollchk():
        stamp('poll back')
        a(f'v_cmp_gt_u32 vcc, 64, v{vPOLL}')
        a('s_nop 0')
        a('s_cbranch_vccnz L_p0_slow')
        a.label('L_p0_ok')
        slow.append(f'''L_p0_slow:
    s_mov_b32 s{sCNT}, {spin}
    v_lshlrev_b32 v{vT1}, 3, v{vLDH}
L_p0_loop:
    buffer_load_dword v{vPOLL}, v{vT1}, {srd(DBG)}, 0 offen sc1
    s_sub_u32 s{sCNT}, s{sCNT}, 1
    s_cbranch_scc1 L_p0_ok
    s_waitcnt vmcnt(0)
    v_cmp_gt_u32 vcc, 64, v{vPOLL}
    s_nop 0
    s_cbranch_vccnz L_p0_loop
    s_branch L_p0_ok''')
        stamp('poll ok')
        vm(f'buffer_load_dwordx4 {vr(TM,4)}, v{vV}, {srd(WS)}, s{sQr} offen sc1')
        a(f's_add_u32 s5, s{sQr}, 32768')
        dyn['qload'] = vm(f'buffer_load_dwordx4 {vr(TM+4,4)}, v{vV}, {srd(WS)}, s5 offen sc1')
    def at_qstage():
        stamp('q back')
        a(f'v_add_u32 v{vT1}, s{sLW}, v{vV}')
        a(f'ds_write_b128 v{vT1}, {vr(TM,4)} offset:{L_WQ}')
        a(f'ds_write_b128 v{vT1}, {vr(TM+4,4)} offset:{L_WQ+1024}')
        a('s_waitcnt lgkmcnt(0)')
        for j in range(4):
            a(f'ds_read_b128 {vr(QB+4*j,4)}, v{vLQ} offset:{L_WQ+1024+64*j}')
        for j in range(4):
            a(f'ds_read_b128 {vr(QA+4*j,4)}, v{vLQ} offset:{L_WQ+64*j}')
        a('s_waitcnt lgkmcnt(0)')
    def at_qk(bt, t):
        def f():
            Q = QB if bt == 0 else QA
            for j in range(4):
                sl, idx, n = where[('K', bt, t, j)]
                c = '0' if j == 0 else vr(S+4*t, 4)
                a(f'v_mfma_f32_16x16x32_bf16 {vr(S+4*t,4)}, {rr(sl,0,3)}, {vr(Q+4*j,4)}, {c}')
                free[n] = True
        return f
    def xrow(reg, tmp, op):
        for sw in ('v_permlane32_swap_b32', 'v_permlane16_swap_b32'):
            a(f'v_mov_b32 v{tmp}, v{reg}')
            a(f'{sw} v{reg}, v{tmp}')
            a(f'{op} v{reg}, v{reg}, v{tmp}')
    def at_sm1(bt):
        def f():
            first = bt in (0, 1)
            a(f'v_max3_f32 v{TM}, v{S}, v{S+1}, v{S+2}')
            a(f'v_max3_f32 v{TM+1}, v{S+3}, v{S+4}, v{S+5}')
            a(f'v_max3_f32 v{TM+2}, v{S+6}, v{S+7}, v{S+8}')
            a(f'v_max3_f32 v{TM+3}, v{S+9}, v{S+10}, v{S+11}')
            a(f'v_max3_f32 v{TM}, v{TM}, v{S+12}, v{S+13}')
            a(f'v_max3_f32 v{TM+1}, v{TM+1}, v{S+14}, v{S+15}')
            a(f'v_max3_f32 v{TM}, v{TM}, v{TM+2}, v{TM+3}')
            if first: a(f'v_max_f32 v{vM}, v{TM}, v{TM+1}')
            else: a(f'v_max3_f32 v{vM}, v{vM}, v{TM}, v{TM+1}')
            xrow(vM, TM, 'v_max_f32')
            if not first: a(f'v_mov_b32 v{vAL}, v{vMC}')
            a(f'v_mul_f32 v{vMC}, s{sC}, v{vM}')
            if not first:
                a(f'v_sub_f32 v{TM}, v{vAL}, v{vMC}')
                a(f'v_exp_f32 v{TM}, v{TM}')
                a(f'v_mul_f32 v{vLS}, v{vLS}, v{TM}')
                if bt != 4:
                    for u in range(2):
                        for r in range(4):
                            a(f'v_mul_f32_dpp v{ACC+4*u+r}, v{TM}, v{ACC+4*u+r} quad_perm:[{r},{r},{r},{r}] {DPPF}')
        return f
    def at_sm2(bt, half):
        def f():
            first = bt in (0, 1)
            rs = range(8*half, 8*half+8)
            for k in rs: a(f'v_fma_f32 v{S+k}, v{S+k}, s{sC}, -v{vMC}')
            for k in rs: a(f'v_exp_f32 v{S+k}, v{S+k}')
            b = S + 8*half
            a(f'v_add_f32 v{TM}, v{b}, v{b+1}')
            a(f'v_add_f32 v{TM+1}, v{b+2}, v{b+3}')
            a(f'v_add_f32 v{TM+2}, v{b+4}, v{b+5}')
            a(f'v_add_f32 v{TM+3}, v{b+6}, v{b+7}')
            a(f'v_add_f32 v{TM}, v{TM}, v{TM+1}')
            a(f'v_add_f32 v{TM+2}, v{TM+2}, v{TM+3}')
            if first and half == 0: a(f'v_add_f32 v{vLS}, v{TM}, v{TM+2}')
            else:
                a(f'v_add_f32 v{TM}, v{TM}, v{TM+2}')
                a(f'v_add_f32 v{vLS}, v{vLS}, v{TM}')
            if bt not in (0, 4):
                for k in range(4): a(f'v_cvt_pk_bf16_f32 v{P+4*half+k}, v{b+2*k}, v{b+2*k+1}')
        return f
    def sum4(base, own):
        a(f'v_lshlrev_b32 v{vT1}, 5, v{vL}')
        ws_ = range(1, 4) if own else range(4)
        for w in ws_:
            for u in range(2):
                a(f'ds_read_b128 {vr(TM+8*w+4*u,4)}, v{vT1} offset:{base + w*2048 + u*16}')
        a('s_waitcnt lgkmcnt(0)')
        src0 = ACC if own else TM
        for k in range(0, 8, 2):
            a(f'v_pk_add_f32 {vr(TM+k,2)}, {vr(src0+k,2)}, {vr(TM+8+k,2)}')
            a(f'v_pk_add_f32 {vr(TM+16+k,2)}, {vr(TM+16+k,2)}, {vr(TM+24+k,2)}')
        for k in range(0, 8, 2):
            a(f'v_pk_add_f32 {vr(TM+k,2)}, {vr(TM+k,2)}, {vr(TM+16+k,2)}')
    def pub_o(branch):
        for k in range(4): a(f'v_cvt_pk_bf16_f32 v{TM+k}, v{TM+2*k}, v{TM+2*k+1}')
        a(f's_lshl_b32 s5, s{sSL}, 10')
        a(f's_add_u32 s5, s5, {WS_O1 + branch*0x40000}')
        a(f'buffer_store_dwordx4 {vr(TM,4)}, v{vV}, {srd(WS)}, s5 offen sc1')
    def at_xch(bt):
        def f():
            lb = L_MLB if bt == 0 else L_MLA
            branch = 1 if bt == 0 else 0
            xrow(vLS, TM, 'v_add_f32')
            a(f'v_mov_b32 v{TM}, v{vMC}')
            a(f'v_mov_b32 v{TM+1}, v{vLS}')
            a(f's_lshl_b32 s5, s{sW}, 5')
            a(f'v_add_u32 v{vT1}, s5, v{vLDH}')
            a(f'ds_write_b64 v{vT1}, {vr(TM,2)} offset:{lb}')
            a('s_waitcnt lgkmcnt(0)')
            a('s_barrier')
            for w in range(4): a(f'ds_read_b64 {vr(TM+2*w,2)}, v{vLDH} offset:{lb+32*w}')
            a('s_waitcnt lgkmcnt(0)')
            a(f'v_max3_f32 v{TM+8}, v{TM}, v{TM+2}, v{TM+4}')
            a(f'v_max_f32 v{TM+8}, v{TM+8}, v{TM+6}')
            a(f'v_sub_f32 v{TM+9}, v{vMC}, v{TM+8}')
            a(f'v_exp_f32 v{TM+9}, v{TM+9}')
            if bt == 4:
                a(f'v_sub_f32 v{TM+10}, v{vAL}, v{TM+8}')
                a(f'v_exp_f32 v{TM+10}, v{TM+10}')
            for k in range(16): a(f'v_mul_f32 v{S+k}, v{S+k}, v{TM+9}')
            for k in range(8): a(f'v_cvt_pk_bf16_f32 v{P+k}, v{S+2*k}, v{S+2*k+1}')
            if bt == 4:
                for u in range(2):
                    for r in range(4):
                        a(f'v_mul_f32_dpp v{ACC+4*u+r}, v{TM+10}, v{ACC+4*u+r} quad_perm:[{r},{r},{r},{r}] {DPPF}')
            a(f's_cmp_lg_u32 s{sW}, 0')
            a.fence()
            a(f's_cbranch_scc1 L_ml{bt}_skip')
            for w in range(4):
                a(f'v_sub_f32 v{TM+2*w}, v{TM+2*w}, v{TM+8}')
            for w in range(4):
                a(f'v_exp_f32 v{TM+2*w}, v{TM+2*w}')
            a(f'v_mul_f32 v{TM+9}, v{TM}, v{TM+1}')
            for w in range(1, 4): a(f'v_fmac_f32 v{TM+9}, v{TM+2*w}, v{TM+2*w+1}')
            a(f'v_cmp_gt_u32 vcc, 4, v{vL}')
            a(f'v_cndmask_b32 v{TM+9}, v{TM+9}, v{TM+8}, vcc')
            a(f'v_lshlrev_b32 v{vT1}, 2, v{vL}')
            a(f'v_mov_b32 v{vT2}, {OOB}')
            a(f'v_cmp_gt_u32 vcc, 8, v{vL}')
            a(f'v_cndmask_b32 v{vT1}, v{vT2}, v{vT1}, vcc')
            a(f's_lshl_b32 s5, s{sSL}, 5')
            a(f's_add_u32 s5, s5, {WS_ML + branch*8192}')
            a(f'buffer_store_dword v{TM+9}, v{vT1}, {srd(WS)}, s5 offen sc1')
            a.fence(); a.label(f'L_ml{bt}_skip')
            if bt == 4:
                a(f's_cmp_lg_u32 s{sW}, 1')
                a.fence()
                a(f's_cbranch_scc1 L_ob_skip')
                sum4(L_ACB, False)
                pub_o(1)
                a.fence(); a.label('L_ob_skip')
        return f
    def at_pv(bt, t):
        def f():
            xs = []
            for r in range(4):
                sl, idx, n = where[('V', bt, t, r)]
                xs.append(sparse(P + 2*t + (r >> 1), r & 1, sl, False))
            for r in range(4):
                sl, idx, n = where[('V', bt, t, r)]
                sparse_mfma(xs[r], sl, bt in (0, 1) and t == 0 and r == 0)
                free[n] = True
        return f
    def at_accb():
        a(f'ds_write_b128 v{vLDW}, {vr(ACC,4)} offset:{L_ACB}')
        a(f'ds_write_b128 v{vLDW}, {vr(ACC+4,4)} offset:{L_ACB+16}')
        stamp('B done')
    kidx = lambda bt, t: (lambda: where[('K', bt, t, 3)][1] if ('K', bt, t, 3) in where else 1 << 30)
    vidx = lambda bt, t: (lambda: where[('V', bt, t, 3)][1] if ('V', bt, t, 3) in where else 1 << 30)
    none = lambda: -1
    atoms = [(at_qproj, lambda: max(iWQ, iCLR), 400),
             (at_flag, lambda: dyn['qstore'], 20),
             (at_poll, lambda: -1 if pos[0] >= dyn['flagpos'] + poll_gap else 1 << 30, 10),
             (at_pollchk, lambda: dyn['poll'], 20),
             (at_qstage, lambda: dyn['qload'], 250)]
    for t in range(4): atoms.append((at_qk(0, t), kidx(0, t), 70))
    for bt in range(5):
        atoms.append((at_sm1(bt), none, 150))
        atoms.append((at_sm2(bt, 0), none, 150))
        atoms.append((at_sm2(bt, 1), none, 150))
        if bt in (0, 4): atoms.append((at_xch(bt), none, 400))
        for t in range(4):
            atoms.append((at_pv(bt, t), vidx(bt, t), 150))
            if bt == 0 and t == 3: atoms.append((at_accb, none, 60))
            if bt < 4: atoms.append((at_qk(bt+1, t), kidx(bt+1, t), 70))
    ai = 0
    log = []
    while pos[0] < len(stream):
        wait(D - 1)
        issue_next()
        spent = 0
        while ai < len(atoms) and spent < budget and atoms[ai][1]() <= St.landed:
            log.append((pos[0], ai)); atoms[ai][0](); spent += atoms[ai][2]; ai += 1
    assert all(free.get(where[('K', 4, t, 3)][2]) for t in range(4)), 'QK not finished at stream end'
    ML, OD = QA, QB
    def ld_ml(f):
        for k in range(4): r = f(f'buffer_load_dwordx4 {vr(ML+4*k,4)}, v{vMLo}, {srd(WS)}, 0 offen offset:{16*k} sc1')
        return r
    def ld_o(f):
        for k in range(2): r = f(f'buffer_load_dwordx4 {vr(OD+4*k,4)}, v{vO1o}, {srd(WS)}, 0 offen offset:{1024*k} sc1')
        return r
    iML = ld_ml(vm); iO = ld_o(vm)
    while ai < len(atoms):
        wait_for(atoms[ai][1]())
        log.append((pos[0], ai)); atoms[ai][0](); ai += 1
    stamp('A pv done')
    a(f'ds_write_b128 v{vLDW}, {vr(ACC,4)} offset:{L_ACA}')
    a(f'ds_write_b128 v{vLDW}, {vr(ACC+4,4)} offset:{L_ACA+16}')
    a('s_waitcnt lgkmcnt(0)')
    a('s_barrier')
    a(f's_cmp_lg_u32 s{sW}, 0')
    a.fence()
    a('s_cbranch_scc1 L_oa_skip')
    sum4(L_ACA, True)
    pub_o(0)
    a.fence(); a.label('L_oa_skip')
    stamp('O pub')
    def chk(base, n, tmp):
        cur = None; k = 0
        a(f'v_max3_u32 v{tmp}, v{base}, v{base+1}, v{base+2}'); k = 3
        while k < n:
            if k + 1 < n: a(f'v_max3_u32 v{tmp}, v{tmp}, v{base+k}, v{base+k+1}'); k += 2
            else: a(f'v_max_u32 v{tmp}, v{tmp}, v{base+k}'); k += 1
        a(f'v_cmp_eq_u32 vcc, -1, v{tmp}')
        a('s_nop 0')
    def poll(name, ld, base, n, first_idx):
        a(f's_mov_b32 s{sCNT}, {spin}')
        if first_idx is not None:
            wait_for(first_idx)
            a('s_branch L_%s_chk' % name)
        a.fence(); a.label(f'L_{name}_loop')
        ld(a)
        a(f's_sub_u32 s{sCNT}, s{sCNT}, 1')
        a(f's_cbranch_scc1 L_{name}_ok')
        a('s_waitcnt vmcnt(0)')
        a.label(f'L_{name}_chk')
        chk(base, n, vT0)
        a(f's_cbranch_vccnz L_{name}_loop')
        a.label(f'L_{name}_ok')
    poll('ml', ld_ml, ML, 16, iML)
    stamp('ML ok')
    F0, F1 = S, S+4
    for r in range(4): a(f'v_max_f32 v{TM+r}, v{ML+r}, v{ML+8+r}')
    for ror in (4, 8):
        for r in range(4): a(f'v_max_f32_dpp v{TM+r}, v{TM+r}, v{TM+r} row_ror:{ror} {DPPF}')
    for r in range(4):
        a(f'v_sub_f32 v{F0+r}, v{ML+r}, v{TM+r}')
        a(f'v_sub_f32 v{F1+r}, v{ML+8+r}, v{TM+r}')
    for r in range(8): a(f'v_exp_f32 v{F0+r}, v{F0+r}')
    for r in range(4): a(f'v_mul_f32 v{TM+r}, v{F0+r}, v{ML+4+r}')
    for r in range(4): a(f'v_fmac_f32 v{TM+r}, v{F1+r}, v{ML+12+r}')
    for ror in (4, 8):
        for r in range(4): a(f'v_add_f32_dpp v{TM+r}, v{TM+r}, v{TM+r} row_ror:{ror} {DPPF}')
    for r in range(4): a(f'v_rcp_f32 v{TM+r}, v{TM+r}')
    for r in range(4):
        a(f'v_mul_f32 v{F0+r}, v{F0+r}, v{TM+r}')
        a(f'v_mul_f32 v{F1+r}, v{F1+r}, v{TM+r}')
    St.landed = -1
    a(f's_mov_b32 s{sCNT}, {spin}')
    a('s_waitcnt vmcnt(0)')
    a('s_branch L_o_chk')
    a.fence(); a.label('L_o_loop')
    ld_o(a)
    a(f's_sub_u32 s{sCNT}, s{sCNT}, 1')
    a('s_cbranch_scc1 L_o_ok')
    a('s_waitcnt vmcnt(0)')
    a.label('L_o_chk')
    chk(OD, 8, vT0)
    a('s_cbranch_vccnz L_o_loop')
    a.label('L_o_ok')
    stamp('O ok')
    for t in range(8):
        d = t >> 1
        if t & 1:
            a(f'v_and_b32 v{TM+t}, s{sMSK}, v{OD+d}')
            a(f'v_and_b32 v{TM+8+t}, s{sMSK}, v{OD+4+d}')
        else:
            a(f'v_lshlrev_b32 v{TM+t}, 16, v{OD+d}')
            a(f'v_lshlrev_b32 v{TM+8+t}, 16, v{OD+4+d}')
    for t in range(8): a(f'v_mul_f32 v{TM+t}, v{TM+t}, v{F0+(t&3)}')
    for t in range(8): a(f'v_fmac_f32 v{TM+t}, v{TM+8+t}, v{F1+(t&3)}')
    for ror in (4, 8):
        for t in range(8): a(f'v_add_f32_dpp v{TM+t}, v{TM+t}, v{TM+t} row_ror:{ror} {DPPF}')
    for k in range(4): a(f'v_cvt_pk_bf16_f32 v{P+k}, v{TM+2*k}, v{TM+2*k+1}')
    for h in range(2):
        xs = [sparse(P + 2*h + (r >> 1), r & 1, None, False) for r in range(4)]
        for r in range(4): sparse_mfma(xs[r], where[('W', 0, 4*h + r, 0)][0], h == 0 and r == 0)
    a(f'ds_write_b128 v{vLDW}, {vr(ACC,4)} offset:{L_OUT}')
    a(f'ds_write_b128 v{vLDW}, {vr(ACC+4,4)} offset:{L_OUT+16}')
    a('s_waitcnt lgkmcnt(0)')
    a('s_barrier')
    a(f's_cmp_lg_u32 s{sW}, 0')
    a('s_cbranch_scc1 L_end')
    sum4(L_OUT, True)
    a(f'v_lshl_add_u32 v{vT1}, v{vI16}, 3, v{vG16}')
    a(f'buffer_store_dwordx4 {vr(TM,4)}, v{vT1}, {srd(WS)}, s{sP2w} offen sc1')
    a(f'buffer_store_dwordx4 {vr(TM+4,4)}, v{vT1}, {srd(WS)}, s{sP2w} offen offset:64 sc1')
    stamp('P2 pub')
    a(f'v_lshrrev_b32 v{vT1}, 2, v{vL}')
    a(f'v_lshlrev_b32 v{vT1}, 11, v{vT1}')
    a(f'v_lshl_add_u32 v{vT1}, v{vLDH}, 1, v{vT1}')
    a(f's_add_u32 s5, s{sP2r}, 32768')
    a(f'v_lshrrev_b32 v{vT2}, 5, v{vL}')
    a(f'v_bfe_u32 v{vT3}, v{vL}, 4, 1')
    a(f'v_lshl_add_u32 v{vT2}, v{vT3}, 1, v{vT2}')
    a(f'v_lshlrev_b32 v{vT2}, 11, v{vT2}')
    a(f'v_lshrrev_b32 v{vT3}, 2, v{vLDH}')
    a(f'v_add_u32 v{vT2}, v{vT2}, v{vT3}')
    a(f'v_and_b32 v{vT3}, 12, v{vL}')
    a(f'v_cmp_eq_u32 vcc, 0, v{vT3}')
    a(f'v_mov_b32 v{vT3}, {OOB}')
    a(f'v_cndmask_b32 v{vT2}, v{vT3}, v{vT2}, vcc')
    def ld_p(f):
        f(f'buffer_load_dwordx4 {vr(S,4)}, v{vT1}, {srd(WS)}, s{sP2r} offen sc1')
        f(f'buffer_load_dwordx4 {vr(S+4,4)}, v{vT1}, {srd(WS)}, s5 offen sc1')
    poll('p2', ld_p, S, 8, None)
    stamp('P2 ok')
    for k in range(4): a(f'v_add_f32 v{S+k}, v{S+k}, v{S+4+k}')
    a(f'v_permlane32_swap_b32 v{S}, v{S+1}')
    a(f'v_permlane32_swap_b32 v{S+2}, v{S+3}')
    a(f'v_add_f32 v{S}, v{S}, v{S+1}')
    a(f'v_add_f32 v{S+2}, v{S+2}, v{S+3}')
    a(f'v_permlane16_swap_b32 v{S}, v{S+2}')
    a(f'v_add_f32 v{S}, v{S}, v{S+2}')
    for ror in (4, 8): a(f'v_add_f32_dpp v{S}, v{S}, v{S} row_ror:{ror} {DPPF}')
    a(f'v_cvt_pk_bf16_f32 v{S}, v{S}, v{S}')
    a(f'buffer_store_short v{S}, v{vT2}, {srd(OUT)}, s{sOUT} offen{outsc}')
    if stamps:
        a('s_waitcnt vmcnt(0)')
        stamp('end')
        a('s_waitcnt lgkmcnt(0)')
        if amp is not None:
            r0 = stl[0][0]; rj = stl[amp][0]; re_ = stl[-1][0]
            a(f's_sub_u32 s5, s{rj}, s{r0}')
            a(f's_mul_i32 s5, s5, 9')
            a.label('L_amp')
            a('s_memrealtime s[6:7]')
            a('s_waitcnt lgkmcnt(0)')
            a(f's_sub_u32 s6, s6, s{re_}')
            a('s_cmp_lt_u32 s6, s5')
            a('s_cbranch_scc1 L_amp')
        n = len(stl)
        a(f's_mul_i32 s5, s2, {n*8}')
        a(f's_add_u32 s5, s5, {STAMP_OFF}')
        a(f'v_mov_b32 v{vT1}, {OOB}')
        a(f'v_cmp_eq_u32 vcc, 0, v{vL}')
        a(f'v_cndmask_b32 v{vT1}, v{vT1}, v{vL}, vcc')
        for k, (r, nm) in enumerate(stl):
            a(f'v_mov_b32 v{TM}, s{r}'); a(f'v_mov_b32 v{TM+1}, s{r+1}')
            a(f'buffer_store_dwordx2 {vr(TM,2)}, v{vT1}, {srd(WS)}, s5 offen offset:{8*k}')
            a('s_nop 1')
    a.label('L_end')
    a('s_endpgm')
    for s in slow: a.raw(s)
    a.raw(f'''.section .rodata,"a"
.p2align 6
.amdhsa_kernel {KN}_kernel
  .amdhsa_next_free_vgpr 512
  .amdhsa_next_free_sgpr 102
  .amdhsa_accum_offset 256
  .amdhsa_group_segment_fixed_size 0
  .amdhsa_kernarg_size 104
  .amdhsa_user_sgpr_count 2
  .amdhsa_user_sgpr_kernarg_segment_ptr 1
  .amdhsa_system_sgpr_workgroup_id_x 1
.end_amdhsa_kernel''')
    return a.text(), log, [n for _, n in stl]

if __name__ == '__main__':
    import argparse, ast
    ap = argparse.ArgumentParser()
    ap.add_argument('out'); ap.add_argument('kw', nargs='*')
    args = ap.parse_args()
    kw = {}
    for x in args.kw:
        k, v = x.split('=', 1)
        try: kw[k] = ast.literal_eval(v)
        except Exception: kw[k] = v
    t, log, st = gen(**kw)
    open(args.out, 'w').write(t)
    print('atoms at stream pos:', log)
    print('stamps:', list(enumerate(st)))
```

```python
import sys, math, struct
from asmlib import Asm
KN = 'concat_heads__gqa_block_cached__sliding_block_cached__decode'
HDR = open('cdna_kernels/' + KN + '.s.ref').read().split('; Override launch')[0]

WS_Q  = 0x00000
WS_ML = 0x10000
WS_O1 = 0x20000
WS_P2 = 0xA0000
WS_SIZE = 0x120000
STAMP_OFF = 0x10000000
OOB = 0x7ffffff0
CSC = math.log2(math.e) / math.sqrt(128.0)
def f2u(x): return struct.unpack('<I', struct.pack('<f', x))[0]
DPPF = 'row_mask:0xf bank_mask:0xf'

def gen(D=8, D0=16, poll_gap=8, budget=300, stamps=False, spin=100000, outsc='', NSLOT=96, sflag=True, nocomp=False, noclear=False, clrfirst=False, amp=None, NK=4, period=4, wqspread=True, worot=True, qpos=0, ppos=None, wqi=0):
    a = Asm()
    WREG = max(NK*4096, 9216)
    L_WQ, L_X = 0, 8192
    L_QP  = 0
    L_MLB = L_QP + 2048
    L_MLA = L_MLB + 128
    L_ACB = L_MLA + 128
    L_ACA = L_ACB + 8192
    L_OUT = L_ACA + 8192
    L_WB  = (L_OUT + 8192 + 1023) // 1024 * 1024
    L_END = L_WB + 4*WREG
    KA, VA, KB, VB, WQ, WO, XS, WS, DBG, OUT = 8, 12, 16, 20, 24, 28, 32, 36, 40, 44
    sW, sT0, sT1, sT2, sT3, sOFF, sC, sFLG, sCNT, sLW = 48, 49, 50, 51, 52, 53, 54, 55, 56, 57
    sQr, sQw, sSL, sCG, sP2w, sP2r, sOUT, sMSK = 58, 59, 60, 61, 62, 63, 64, 65
    pAx, pAk, pAv, pAwq, pAwo, pBx, pBk, pBv, pBwq, pBwo, pOut, pDbg, pWs = range(68, 94, 2)
    srd = lambda r: f's[{r}:{r+3}]'
    vL, vK, vV, vT0, vT1, vT2, vT3, vPOLL = 0, 1, 2, 3, 4, 5, 6, 7
    vSEL = 8
    vM, vLS, vAL, vMC = 12, 13, 14, 15
    QA, QB, S, P, ACC = 16, 32, 48, 64, 72
    XP = 80
    TM = 88
    vLDW, vLDH, vLQ, vG16, vI16, vWOo = 120, 121, 122, 123, 124, 125
    vMLo, vO1o = 126, 127
    vKD, vKR, KT = 128, 132, 136
    def vslot(bt, t, j):
        return ('v', 192 + (t*4 + j)*4) if bt == 0 else ('a', (((bt-1)*4 + t)*4 + j)*4)
    def rr(sl, lo, hi): return f'{sl[0]}[{sl[1]+lo}:{sl[1]+hi}]'
    vr = lambda r, n: f'v[{r}:{r+n-1}]'
    stl = []
    def stamp(name):
        if stamps:
            r = 100 if not stl else 68 + 2*(len(stl)-1)
            assert r <= 98 or not stl
            a(f's_memrealtime s[{r}:{r+1}]'); stl.append((r, name))

    a.raw(HDR.rstrip())
    a.raw(f'; @launch grid=(256,1,1) block=(256,1,1) lds={L_END}')
    a.raw('.amdgcn_target "amdgcn-amd-amdhsa--gfx950"\n.text')
    a.raw(f'.globl {KN}_kernel\n.p2align 8\n.type {KN}_kernel,@function\n{KN}_kernel:')
    a('s_cmp_ge_u32 s2, 256')
    a('s_cbranch_scc1 L_end')
    stamp('start')
    a('s_load_dwordx16 s[68:83], s[0:1], 0')
    a('s_load_dwordx8 s[84:91], s[0:1], 64')
    a('s_load_dwordx2 s[92:93], s[0:1], 96')
    a(f'v_lshrrev_b32 v{vT0}, 6, v0')
    a(f'v_and_b32 v{vL}, 63, v0')
    a(f'v_readfirstlane_b32 s{sW}, v{vT0}')
    a(f'v_lshrrev_b32 v{vG16}, 4, v{vL}')
    a(f'v_lshlrev_b32 v{vG16}, 4, v{vG16}')
    a(f'v_and_b32 v{vI16}, 15, v{vL}')
    a(f'v_lshlrev_b32 v{vI16}, 4, v{vI16}')
    a(f'v_lshlrev_b32 v{vV}, 4, v{vL}')
    a(f'v_lshrrev_b32 v{vT1}, 2, v{vL}')
    a(f'v_lshlrev_b32 v{vT1}, 13, v{vT1}')
    a(f'v_and_b32 v{vT0}, 3, v{vL}')
    a(f'v_lshl_add_u32 v{vT1}, v{vT0}, 4, v{vT1}')
    a(f'v_lshl_add_u32 v{vT2}, v{vG16}, 6, v{vI16}')
    a(f'v_bfe_u32 v{vT3}, v{vL}, 2, 2')
    a(f's_and_b32 s{sT0}, s2, 7')
    a(f's_lshr_b32 s{sT1}, s2, 3')
    a(f's_lshl_b32 s{sT2}, s{sT1}, 21')
    a(f's_lshl_b32 s{sT3}, s{sW}, 12')
    a(f's_add_u32 s{sT2}, s{sT2}, s{sT3}')
    a(f's_lshl_b32 s3, s{sT0}, 18')
    a(f's_add_u32 s3, s3, s{sT2}')
    a(f's_lshl_b32 s4, s{sT0}, 16')
    a(f's_add_u32 s4, s4, s{sT2}')
    a(f's_add_u32 s4, s4, {6144*256}')
    if not wqspread:
        a(f's_and_b32 s5, s{sT1}, 15')
        a(f's_lshl_b32 s6, s{sT0}, 4')
        a(f's_add_u32 s5, s5, s6')
    else:
        a(f's_bfe_u32 s5, s2, 0x30004')
        a(f's_add_u32 s6, s5, s{sT0}')
        a(f's_lshr_b32 s7, s2, 5')
        a(f's_and_b32 s7, s7, 4')
        a(f's_add_u32 s6, s6, s7')
        a(f's_and_b32 s6, s6, 7')
        a(f's_lshl_b32 s5, s5, 3')
        a(f's_add_u32 s5, s5, s6')
        a(f's_lshl_b32 s5, s5, 1')
        a(f's_and_b32 s6, s{sT1}, 1')
        a(f's_add_u32 s5, s5, s6')
    a(f's_lshl_b32 s5, s5, 6')
    a(f's_lshr_b32 s7, s2, 7')
    a(f's_lshl_b32 s6, s7, 15')
    a(f's_add_u32 s{sQw}, s5, s6')
    a(f's_lshl_b32 s6, s{sW}, 20')
    a(f's_add_u32 s5, s5, s6')
    a(f's_mul_i32 s{sLW}, s{sW}, {WREG}')
    a(f's_add_u32 s{sLW}, s{sLW}, {L_WB}')
    a('s_waitcnt lgkmcnt(0)')
    a('s_cmp_eq_u32 s7, 0')
    a(f's_cselect_b32 s{WQ}, s{pAwq}, s{pBwq}')
    a(f's_cselect_b32 s{WQ+1}, s{pAwq+1}, s{pBwq+1}')
    a(f's_cselect_b32 s{XS}, s{pAx}, s{pBx}')
    a(f's_cselect_b32 s{XS+1}, s{pAx+1}, s{pBx+1}')
    a(f's_cselect_b32 s{WO}, s{pAwo}, s{pBwo}')
    a(f's_cselect_b32 s{WO+1}, s{pAwo+1}, s{pBwo+1}')
    a(f's_add_u32 s{WQ}, s{WQ}, s5')
    a(f's_addc_u32 s{WQ+1}, s{WQ+1}, 0')
    a(f's_sub_u32 s{WQ+2}, {512*8192}, s5')
    a(f's_mov_b32 s{WQ+3}, 0x20000')
    class St: issued = 0; landed = -1
    def vm(t):
        a(t); St.issued += 1; return St.issued - 1
    def wait(n):
        n = max(n, 0)
        a(f's_waitcnt vmcnt({n})'); St.landed = max(St.landed, St.issued - n - 1)
    def wait_for(idx):
        if St.landed < idx: wait(St.issued - idx - 1)
    dyn = {}
    def ld_wq(t):
        a(f's_add_u32 m0, s{sLW}, {L_WQ + t*1024}')
        a(f's_mov_b32 s5, {t*16*8192}')
        dyn['wq'] = vm(f'buffer_load_dwordx4 v{vPOLL}, {srd(WQ)}, s5 offen nt lds')
        dyn['nwq'] = t + 1
    a(f'v_mov_b32 v{vPOLL}, v{vT1}')
    for t in range(8 if not wqi else 1): ld_wq(t)
    a(f's_mov_b32 s{XS+2}, 4096')
    a(f's_mov_b32 s{XS+3}, 0x20000')
    a(f's_lshl_b32 s{sOFF}, s{sW}, 8')
    a(f's_add_u32 m0, s{sLW}, {L_X}')
    iWQ = vm(f'buffer_load_dwordx4 v{vT2}, {srd(XS)}, s{sOFF} offen lds')
    def mk(d, p, off, size):
        a(f's_add_u32 s{d}, s{p}, s{off}')
        a(f's_addc_u32 s{d+1}, s{p+1}, 0')
        a(f's_mov_b32 s{d+2}, {size}')
        a(f's_mov_b32 s{d+3}, 0x20000')
    mk(KB, pBk, 4, 3*16384 + 4096); mk(VB, pBv, 4, 3*16384 + 4096)
    mk(KA, pAk, 3, 15*16384 + 4096); mk(VA, pAv, 3, 15*16384 + 4096)
    for d, p, size in ((WS, pWs, WS_SIZE if not stamps else 0x10100000), (DBG, pDbg, 256), (OUT, pOut, 8192)):
        a(f's_mov_b32 s{d}, s{p}'); a(f's_mov_b32 s{d+1}, s{p+1}')
        a(f's_mov_b32 s{d+2}, {size}'); a(f's_mov_b32 s{d+3}, 0x20000')

    stream = []
    for kind, bts in (('V', range(4)), ('K', range(5)), ('V', [4])):
        for bt in bts:
            for t in range(4):
                for j in range(4): stream.append((kind, bt, t, j))
    for t in range(8): stream.append(('W', 0, t, 0))
    where = {}
    free = {}
    pos = [0]
    def issue_next():
        n = pos[0]; kind, bt, t, j = stream[n]; pos[0] += 1
        tt = t if bt == 0 else (bt-1)*4 + t
        if kind == 'W':
            sl = vslot(0, t >> 2, t & 3)
            assert free.get(('V', 0, t >> 2))
            u, r = t >> 2, t & 3
            a(f's_mov_b32 s{sOFF}, {(r*128 + 4*u)*1024}')
            idx = vm(f'buffer_load_dwordx4 {rr(sl,0,3)}, v{vWOo}, {srd(WO)}, s{sOFF} offen nt')
        elif kind == 'K':
            kt = bt*4 + t
            sl = (kt % NK) * 4096
            if kt >= NK: assert free.get(('K', (kt-NK) >> 2, (kt-NK) & 3)), ('K ring', kt)
            else: assert free.get('stage'), 'staging still in use'
            if j == 0:
                a(f's_add_u32 m0, s{sLW}, {sl}')
                a(f's_mov_b32 s{sOFF}, {tt*16384}')
            idx = vm(f'buffer_load_dwordx4 v{vKD+j}, {srd(KB if bt == 0 else KA)}, s{sOFF} offen offset:{j*1024} nt lds')
        else:
            sl = vslot(bt, t, j)
            if j == 0: a(f's_mov_b32 s{sOFF}, {tt*16384}')
            idx = vm(f'buffer_load_dwordx4 {rr(sl,0,3)}, v{vV}, {srd(VB if bt == 0 else VA)}, s{sOFF} offen offset:{j*1024} nt')
        where[(kind, bt, t, j)] = (sl, idx, n)
        if wqi and dyn['nwq'] < 8 and pos[0] % wqi == 0:
            if St.issued >= D0: wait(D - 1)
            ld_wq(dyn['nwq'])
    while St.issued < D0: issue_next()

    a(f's_and_b32 s3, s{sT1}, 7')
    a(f's_lshr_b32 s4, s2, 6')
    a(f's_lshl_b32 s5, s3, 5')
    a(f's_lshl_b32 s6, s4, 3')
    a(f's_add_u32 s5, s5, s6')
    a(f's_add_u32 s{sSL}, s5, s{sT0}')
    a(f's_lshl_b32 s5, s4, 13')
    a(f's_lshl_b32 s6, s3, 10')
    a(f's_add_u32 s{sQr}, s5, s6')
    a(f's_and_b32 s3, s{sT1}, 3')
    a(f's_bfe_u32 s4, s2, 0x20005')
    a(f's_lshl_b32 s5, s7, 3')
    a(f's_add_u32 s{sCG}, s5, s{sT0}')
    a(f's_lshl_b32 s5, s{sT0}, 2')
    a(f's_add_u32 s5, s5, s4')
    a(f's_lshl_b32 s6, s7, 2')
    a(f's_add_u32 s6, s6, s3')
    a(f's_lshl_b32 s{sT2}, s6, 16')
    a(f's_add_u32 s{sT2}, s{sT2}, {WS_P2}')
    a(f's_lshl_b32 s{sT3}, s5, 11')
    a(f's_add_u32 s{sP2w}, s{sT2}, s{sT3}')
    a(f's_lshl_b32 s{sT3}, s5, 6')
    a(f's_add_u32 s{sP2r}, s{sT2}, s{sT3}')
    a(f's_lshl_b32 s6, s6, 8')
    a(f's_lshl_b32 s{sT3}, s5, 3')
    a(f's_add_u32 s{sOUT}, s6, s{sT3}')
    if worot:
        a(f's_add_u32 s4, s4, s{sW}')
        a(f's_and_b32 s4, s4, 3')
    a(f's_lshl_b32 s5, s{sT0}, 9')
    a(f's_lshl_b32 s6, s{sW}, 5')
    a(f's_add_u32 s5, s5, s6')
    a(f's_add_u32 s5, s5, s4')
    a(f's_lshl_b32 s5, s5, 10')
    a(f's_lshl_b32 s6, s3, 8')
    a(f's_add_u32 s5, s5, s6')
    a(f's_add_u32 s{WO}, s{WO}, s5')
    a(f's_addc_u32 s{WO+1}, s{WO+1}, 0')
    a(f's_sub_u32 s{WO+2}, {4096*1024}, s5')
    a(f's_mov_b32 s{WO+3}, 0x20000')
    a(f'v_lshl_add_u32 v{vWOo}, v{vG16}, 9, v{vI16}')
    a(f'v_lshlrev_b32 v{vT1}, 1, v{vT3}')
    a(f'v_lshl_add_u32 v{vT1}, v{vT0}, 3, v{vT1}')
    a(f's_lshl_b32 s5, s{sCG}, 10')
    a(f's_add_u32 s5, s5, {WS_ML}')
    a(f'v_lshl_add_u32 v{vMLo}, v{vT1}, 5, s5')
    a(f's_lshl_b32 s5, s{sCG}, 15')
    a(f's_lshl_b32 s6, s4, 8')
    a(f's_add_u32 s5, s5, s6')
    a(f's_lshl_b32 s6, s{sW}, 6')
    a(f's_add_u32 s5, s5, s6')
    a(f's_add_u32 s5, s5, {WS_O1}')
    a(f'v_lshl_add_u32 v{vO1o}, v{vT1}, 10, v{vG16}')
    a(f'v_add_u32 v{vO1o}, s5, v{vO1o}')
    a(f's_lshl_b32 s5, s{sW}, 18')
    a(f's_lshl_b32 s6, s{sSL}, 10')
    a(f's_add_u32 s5, s5, s6')
    a(f's_add_u32 s5, s5, {WS_O1}')
    a(f's_lshl_b32 s6, s{sW}, 10')
    a(f's_add_u32 s6, s6, s{sP2w}')
    a(f's_sub_u32 s6, s6, 2048')
    a(f's_cmp_lt_u32 s{sW}, 2')
    a(f's_cselect_b32 s5, s5, s6')
    for k in range(4): a(f'v_mov_b32 v{TM+k}, -1')
    if not noclear: vm(f'buffer_store_dwordx4 {vr(TM,4)}, v{vV}, {srd(WS)}, s5 offen sc1')
    a(f's_lshl_b32 s5, s{sW}, 13')
    a(f's_lshl_b32 s6, s{sSL}, 5')
    a(f's_add_u32 s5, s5, s6')
    a(f's_add_u32 s5, s5, {WS_ML}')
    a(f's_cmp_lt_u32 s{sW}, 2')
    a(f's_cselect_b32 s6, 2, 0')
    a(f'v_mov_b32 v{vT2}, {OOB}')
    a(f'v_cmp_gt_u32 vcc, s6, v{vL}')
    a(f'v_cndmask_b32 v{vT2}, v{vT2}, v{vV}, vcc')
    iCLR = vm(f'buffer_store_dwordx4 {vr(TM,4)}, v{vT2}, {srd(WS)}, s5 offen sc1') if not noclear else -1
    for hf in range(2):
        lo = 0x0c0c0000 | ((2*hf+1) << 8) | (2*hf)
        hi = ((2*hf+1) << 24) | ((2*hf) << 16) | 0x0c0c
        for x in range(2):
            r = vSEL + 2*hf + x
            a(f'v_mov_b32 v{r}, 0x0c0c0c0c')
            a(f'v_mov_b32 v{vT1}, {lo}')
            a(f'v_cmp_eq_u32 vcc, {2*x}, v{vT3}')
            a(f'v_cndmask_b32 v{r}, v{r}, v{vT1}, vcc')
            a(f'v_mov_b32 v{vT1}, {hi}')
            a(f'v_cmp_eq_u32 vcc, {2*x+1}, v{vT3}')
            a(f'v_cndmask_b32 v{r}, v{r}, v{vT1}, vcc')
    a(f's_mov_b32 s{sC}, {f2u(CSC)}')
    a(f's_mov_b32 s{sFLG}, 0x01010101')
    a(f's_mov_b32 s{sMSK}, 0xffff0000')
    a(f's_lshl_b32 s5, s{sW}, 11')
    a(f'v_lshl_add_u32 v{vLDW}, v{vL}, 5, s5')
    a(f'v_lshlrev_b32 v{vLDH}, 3, v{vT0}')
    a(f'v_lshl_add_u32 v{vLQ}, v{vT0}, 8, v{vG16}')
    a(f'v_add_u32 v{vLQ}, s{sLW}, v{vLQ}')

    a(f'v_lshlrev_b32 v{vT1}, 2, v{vG16}')
    a(f'v_xor_b32 v{vT1}, v{vT1}, v{vV}')
    for j in range(4): a(f'v_xor_b32 v{vKD+j}, {16*j}, v{vT1}')
    a(f'v_lshlrev_b32 v{vT1}, 4, v{vT0}')
    a(f'v_xor_b32 v{vT1}, v{vT1}, v{vG16}')
    a(f'v_lshl_add_u32 v{vT1}, v{vT3}, 6, v{vT1}')
    a(f'v_lshl_add_u32 v{vT1}, v{vT3}, 8, v{vT1}')
    a(f'v_lshl_add_u32 v{vT1}, v{vT0}, 10, v{vT1}')
    for j in range(4):
        a(f'v_xor_b32 v{vKR+j}, {64*j}, v{vT1}')
        a(f'v_add_u32 v{vKR+j}, s{sLW}, v{vKR+j}')
    xp = [0]
    def sparse(pk, hf, sl, first):
        x = XP + 2*(xp[0] % 4); xp[0] += 1
        a(f'v_perm_b32 v{x}, v{pk}, v{pk}, v{vSEL+2*hf}')
        a(f'v_perm_b32 v{x+1}, v{pk}, v{pk}, v{vSEL+2*hf+1}')
        return x
    def sparse_mfma(x, sl, first):
        for u in range(2):
            c = '0' if first else vr(ACC+4*u, 4)
            a(f'v_mfma_f32_16x16x16_bf16 {vr(ACC+4*u,4)}, {vr(x,2)}, {rr(sl,2*u,2*u+1)}, {c}')
    slow = []
    def at_qproj():
        stamp('wq landed')
        a(f'v_lshlrev_b32 v{vT1}, 5, v{vG16}')
        a(f'v_lshl_add_u32 v{vT1}, v{vT3}, 6, v{vT1}')
        a(f'v_add3_u32 v{vT1}, v{vT1}, v{vLDH}, s{sLW}')
        for ks in range(4):
            a(f'ds_read_b128 {vr(S+4*ks,4)}, v{vLQ} offset:{L_X + 64*ks}')
        for ks in range(4):
            for ct in range(2):
                for z in range(2):
                    a(f'ds_read_b64_tr_b16 {vr(TM + (ks*2+ct)*4 + 2*z, 2)}, v{vT1} offset:{L_WQ + (32*ks + 4*z)*64 + 32*ct}')
        a('s_waitcnt lgkmcnt(0)')
        for ks in range(4):
            for ct in range(2):
                c = '0' if ks == 0 else vr(ACC+4*ct, 4)
                a(f'v_mfma_f32_16x16x32_bf16 {vr(ACC+4*ct,4)}, {vr(S+4*ks,4)}, {vr(TM+(ks*2+ct)*4,4)}, {c}')
        a(f's_lshl_b32 s5, s{sW}, 9')
        a(f'v_add_u32 v{vT1}, s5, v{vI16}')
        a(f'ds_write_b128 v{vT1}, {vr(ACC,4)} offset:{L_QP}')
        a(f'ds_write_b128 v{vT1}, {vr(ACC+4,4)} offset:{L_QP+256}')
        a('s_waitcnt lgkmcnt(0)')
        a('s_barrier')
        a(f's_cmp_lg_u32 s{sW}, 0')
        a.fence()
        a('s_cbranch_scc1 L_q_skip')
        a(f'v_lshrrev_b32 v{vT1}, 2, v{vG16}')
        a(f'v_lshl_add_u32 v{vT1}, v{vI16}, 1, v{vT1}')
        a(f'v_add_u32 v{vT1}, {L_QP}, v{vT1}')
        a(f'v_add_u32 v{vT2}, 1024, v{vT1}')
        a(f'ds_read2_b32 {vr(TM,2)}, v{vT1} offset0:0 offset1:4')
        a(f'ds_read2_b32 {vr(TM+2,2)}, v{vT1} offset0:128 offset1:132')
        a(f'ds_read2_b32 {vr(TM+4,2)}, v{vT2} offset0:0 offset1:4')
        a(f'ds_read2_b32 {vr(TM+6,2)}, v{vT2} offset0:128 offset1:132')
        a(f'v_lshlrev_b32 v{vT1}, 9, v{vG16}')
        a(f'v_lshrrev_b32 v{vT2}, 2, v{vI16}')
        a(f'v_add_u32 v{vT1}, v{vT1}, v{vT2}')
        a('s_waitcnt lgkmcnt(0)')
        for k in range(2):
            a(f'v_add_f32 v{TM+k}, v{TM+k}, v{TM+2+k}')
            a(f'v_add_f32 v{TM+4+k}, v{TM+4+k}, v{TM+6+k}')
        for k in range(2): a(f'v_add_f32 v{TM+k}, v{TM+k}, v{TM+4+k}')
        a(f'v_cvt_pk_bf16_f32 v{TM}, v{TM}, v{TM+1}')
        a(f'buffer_store_dword v{TM}, v{vT1}, {srd(WS)}, s{sQw} offen sc1')
        a.fence(); a.label('L_q_skip')
        dyn['qstore'] = St.issued
        free['stage'] = True
        stamp('q stored')
    def at_flag():
        a(f's_cmp_lg_u32 s{sW}, 0')
        a.fence()
        a('s_cbranch_scc1 L_f_skip')
        a(f's_and_b32 s5, s2, 3')
        a(f's_lshl_b32 s5, s5, 6')
        a(f's_mov_b32 s6, 1')
        a(f's_atomic_add s6, s[{DBG}:{DBG+1}], s5')
        a.fence(); a.label('L_f_skip')
        dyn['flagpos'] = pos[0]
        stamp('flag')
    def at_poll():
        a(f'v_lshlrev_b32 v{vT1}, 3, v{vLDH}')
        dyn['poll'] = vm(f'buffer_load_dword v{vPOLL}, v{vT1}, {srd(DBG)}, 0 offen sc1')
    def at_pollchk():
        stamp('poll back')
        a(f'v_cmp_gt_u32 vcc, 64, v{vPOLL}')
        a('s_nop 0')
        a('s_cbranch_vccnz L_p0_slow')
        a.label('L_p0_ok')
        slow.append(f'''L_p0_slow:
    s_mov_b32 s{sCNT}, {spin}
    v_lshlrev_b32 v{vT1}, 3, v{vLDH}
L_p0_loop:
    buffer_load_dword v{vPOLL}, v{vT1}, {srd(DBG)}, 0 offen sc1
    s_sub_u32 s{sCNT}, s{sCNT}, 1
    s_cbranch_scc1 L_p0_ok
    s_waitcnt vmcnt(0)
    v_cmp_gt_u32 vcc, 64, v{vPOLL}
    s_nop 0
    s_cbranch_vccnz L_p0_loop
    s_branch L_p0_ok''')
        stamp('poll ok')
        vm(f'buffer_load_dwordx4 {vr(TM,4)}, v{vV}, {srd(WS)}, s{sQr} offen sc1')
        a(f's_add_u32 s5, s{sQr}, 32768')
        dyn['qload'] = vm(f'buffer_load_dwordx4 {vr(TM+4,4)}, v{vV}, {srd(WS)}, s5 offen sc1')
    def at_qstage():
        stamp('q back')
        a(f's_lshl_b32 s5, s{sW}, 11')
        a(f'v_add_u32 v{vT1}, s5, v{vV}')
        a(f'ds_write_b128 v{vT1}, {vr(TM,4)} offset:{L_ACA}')
        a(f'ds_write_b128 v{vT1}, {vr(TM+4,4)} offset:{L_ACA+1024}')
        a(f's_sub_u32 s5, s5, s{sLW}')
        a(f'v_add_u32 v{vT1}, s5, v{vLQ}')
        a('s_waitcnt lgkmcnt(0)')
        for j in range(4):
            a(f'ds_read_b128 {vr(QB+4*j,4)}, v{vT1} offset:{L_ACA+1024+64*j}')
        for j in range(4):
            a(f'ds_read_b128 {vr(QA+4*j,4)}, v{vT1} offset:{L_ACA+64*j}')
        a('s_waitcnt lgkmcnt(0)')
    def at_qk(bt, t):
        def f():
            Q = QB if bt == 0 else QA
            sl = where[('K', bt, t, 0)][0]
            kt = KT + 16*(t & 1)
            for j in range(4):
                a(f'ds_read_b128 {vr(kt+4*j,4)}, v{vKR+j} offset:{sl}')
            for j in range(4):
                a(f's_waitcnt lgkmcnt({0 if stamps else 3-j})')
                c = '0' if j == 0 else vr(S+4*t, 4)
                a(f'v_mfma_f32_16x16x32_bf16 {vr(S+4*t,4)}, {vr(kt+4*j,4)}, {vr(Q+4*j,4)}, {c}')
            free[('K', bt, t)] = True
        return f
    def xrow(reg, tmp, op):
        for sw in ('v_permlane32_swap_b32', 'v_permlane16_swap_b32'):
            a(f'v_mov_b32 v{tmp}, v{reg}')
            a(f'{sw} v{reg}, v{tmp}')
            a(f'{op} v{reg}, v{reg}, v{tmp}')
    def at_sm1(bt):
        def f():
            first = bt in (0, 1)
            a(f'v_max3_f32 v{TM}, v{S}, v{S+1}, v{S+2}')
            a(f'v_max3_f32 v{TM+1}, v{S+3}, v{S+4}, v{S+5}')
            a(f'v_max3_f32 v{TM+2}, v{S+6}, v{S+7}, v{S+8}')
            a(f'v_max3_f32 v{TM+3}, v{S+9}, v{S+10}, v{S+11}')
            a(f'v_max3_f32 v{TM}, v{TM}, v{S+12}, v{S+13}')
            a(f'v_max3_f32 v{TM+1}, v{TM+1}, v{S+14}, v{S+15}')
            a(f'v_max3_f32 v{TM}, v{TM}, v{TM+2}, v{TM+3}')
            if first: a(f'v_max_f32 v{vM}, v{TM}, v{TM+1}')
            else: a(f'v_max3_f32 v{vM}, v{vM}, v{TM}, v{TM+1}')
            xrow(vM, TM, 'v_max_f32')
            if not first: a(f'v_mov_b32 v{vAL}, v{vMC}')
            a(f'v_mul_f32 v{vMC}, s{sC}, v{vM}')
            if not first:
                a(f'v_sub_f32 v{TM}, v{vAL}, v{vMC}')
                a(f'v_exp_f32 v{TM}, v{TM}')
                a(f'v_mul_f32 v{vLS}, v{vLS}, v{TM}')
                if bt != 4:
                    for u in range(2):
                        for r in range(4):
                            a(f'v_mul_f32_dpp v{ACC+4*u+r}, v{TM}, v{ACC+4*u+r} quad_perm:[{r},{r},{r},{r}] {DPPF}')
        return f
    def at_sm2(bt, half):
        def f():
            first = bt in (0, 1)
            rs = range(8*half, 8*half+8)
            for k in rs: a(f'v_fma_f32 v{S+k}, v{S+k}, s{sC}, -v{vMC}')
            for k in rs: a(f'v_exp_f32 v{S+k}, v{S+k}')
            b = S + 8*half
            a(f'v_add_f32 v{TM}, v{b}, v{b+1}')
            a(f'v_add_f32 v{TM+1}, v{b+2}, v{b+3}')
            a(f'v_add_f32 v{TM+2}, v{b+4}, v{b+5}')
            a(f'v_add_f32 v{TM+3}, v{b+6}, v{b+7}')
            a(f'v_add_f32 v{TM}, v{TM}, v{TM+1}')
            a(f'v_add_f32 v{TM+2}, v{TM+2}, v{TM+3}')
            if first and half == 0: a(f'v_add_f32 v{vLS}, v{TM}, v{TM+2}')
            else:
                a(f'v_add_f32 v{TM}, v{TM}, v{TM+2}')
                a(f'v_add_f32 v{vLS}, v{vLS}, v{TM}')
            if bt not in (0, 4):
                for k in range(4): a(f'v_cvt_pk_bf16_f32 v{P+4*half+k}, v{b+2*k}, v{b+2*k+1}')
        return f
    def sum4(base, own):
        a(f'v_lshlrev_b32 v{vT1}, 5, v{vL}')
        ws_ = range(1, 4) if own else range(4)
        for w in ws_:
            for u in range(2):
                a(f'ds_read_b128 {vr(TM+8*w+4*u,4)}, v{vT1} offset:{base + w*2048 + u*16}')
        a('s_waitcnt lgkmcnt(0)')
        src0 = ACC if own else TM
        for k in range(0, 8, 2):
            a(f'v_pk_add_f32 {vr(TM+k,2)}, {vr(src0+k,2)}, {vr(TM+8+k,2)}')
            a(f'v_pk_add_f32 {vr(TM+16+k,2)}, {vr(TM+16+k,2)}, {vr(TM+24+k,2)}')
        for k in range(0, 8, 2):
            a(f'v_pk_add_f32 {vr(TM+k,2)}, {vr(TM+k,2)}, {vr(TM+16+k,2)}')
    def pub_o(branch):
        for k in range(4): a(f'v_cvt_pk_bf16_f32 v{TM+k}, v{TM+2*k}, v{TM+2*k+1}')
        a(f's_lshl_b32 s5, s{sSL}, 10')
        a(f's_add_u32 s5, s5, {WS_O1 + branch*0x40000}')
        a(f'buffer_store_dwordx4 {vr(TM,4)}, v{vV}, {srd(WS)}, s5 offen sc1')
    def at_xch(bt):
        def f():
            lb = L_MLB if bt == 0 else L_MLA
            branch = 1 if bt == 0 else 0
            xrow(vLS, TM, 'v_add_f32')
            a(f'v_mov_b32 v{TM}, v{vMC}')
            a(f'v_mov_b32 v{TM+1}, v{vLS}')
            a(f's_lshl_b32 s5, s{sW}, 5')
            a(f'v_add_u32 v{vT1}, s5, v{vLDH}')
            a(f'ds_write_b64 v{vT1}, {vr(TM,2)} offset:{lb}')
            a('s_waitcnt lgkmcnt(0)')
            a('s_barrier')
            for w in range(4): a(f'ds_read_b64 {vr(TM+2*w,2)}, v{vLDH} offset:{lb+32*w}')
            a('s_waitcnt lgkmcnt(0)')
            a(f'v_max3_f32 v{TM+8}, v{TM}, v{TM+2}, v{TM+4}')
            a(f'v_max_f32 v{TM+8}, v{TM+8}, v{TM+6}')
            a(f'v_sub_f32 v{TM+9}, v{vMC}, v{TM+8}')
            a(f'v_exp_f32 v{TM+9}, v{TM+9}')
            if bt == 4:
                a(f'v_sub_f32 v{TM+10}, v{vAL}, v{TM+8}')
                a(f'v_exp_f32 v{TM+10}, v{TM+10}')
            for k in range(16): a(f'v_mul_f32 v{S+k}, v{S+k}, v{TM+9}')
            for k in range(8): a(f'v_cvt_pk_bf16_f32 v{P+k}, v{S+2*k}, v{S+2*k+1}')
            if bt == 4:
                for u in range(2):
                    for r in range(4):
                        a(f'v_mul_f32_dpp v{ACC+4*u+r}, v{TM+10}, v{ACC+4*u+r} quad_perm:[{r},{r},{r},{r}] {DPPF}')
            a(f's_cmp_lg_u32 s{sW}, 0')
            a.fence()
            a(f's_cbranch_scc1 L_ml{bt}_skip')
            for w in range(4):
                a(f'v_sub_f32 v{TM+2*w}, v{TM+2*w}, v{TM+8}')
            for w in range(4):
                a(f'v_exp_f32 v{TM+2*w}, v{TM+2*w}')
            a(f'v_mul_f32 v{TM+9}, v{TM}, v{TM+1}')
            for w in range(1, 4): a(f'v_fmac_f32 v{TM+9}, v{TM+2*w}, v{TM+2*w+1}')
            a(f'v_cmp_gt_u32 vcc, 4, v{vL}')
            a(f'v_cndmask_b32 v{TM+9}, v{TM+9}, v{TM+8}, vcc')
            a(f'v_lshlrev_b32 v{vT1}, 2, v{vL}')
            a(f'v_mov_b32 v{vT2}, {OOB}')
            a(f'v_cmp_gt_u32 vcc, 8, v{vL}')
            a(f'v_cndmask_b32 v{vT1}, v{vT2}, v{vT1}, vcc')
            a(f's_lshl_b32 s5, s{sSL}, 5')
            a(f's_add_u32 s5, s5, {WS_ML + branch*8192}')
            a(f'buffer_store_dword v{TM+9}, v{vT1}, {srd(WS)}, s5 offen sc1')
            a.fence(); a.label(f'L_ml{bt}_skip')
            if bt == 4:
                a(f's_cmp_lg_u32 s{sW}, 1')
                a.fence()
                a(f's_cbranch_scc1 L_ob_skip')
                sum4(L_ACB, False)
                pub_o(1)
                a.fence(); a.label('L_ob_skip')
        return f
    def at_pv(bt, t):
        def f():
            xs = []
            for r in range(4):
                sl, idx, n = where[('V', bt, t, r)]
                xs.append(sparse(P + 2*t + (r >> 1), r & 1, sl, False))
            for r in range(4):
                sl, idx, n = where[('V', bt, t, r)]
                sparse_mfma(xs[r], sl, bt in (0, 1) and t == 0 and r == 0)
            free[('V', bt, t)] = True
        return f
    def at_accb():
        a(f'ds_write_b128 v{vLDW}, {vr(ACC,4)} offset:{L_ACB}')
        a(f'ds_write_b128 v{vLDW}, {vr(ACC+4,4)} offset:{L_ACB+16}')
        stamp('B done')
    kidx = lambda bt, t: (lambda: where[('K', bt, t, 3)][1] if ('K', bt, t, 3) in where else 1 << 30)
    vidx = lambda bt, t: (lambda: where[('V', bt, t, 3)][1] if ('V', bt, t, 3) in where else 1 << 30)
    none = lambda: -1
    atoms = [(at_qproj, lambda: max(iWQ, iCLR, dyn['wq']) if pos[0] >= qpos and dyn['nwq'] == 8 else 1 << 30, 400),
             (at_flag, lambda: dyn['qstore'], 20),
             (at_poll, lambda: -1 if pos[0] >= (dyn['flagpos'] + poll_gap if ppos is None else ppos) else 1 << 30, 10),
             (at_pollchk, lambda: dyn['poll'], 20),
             (at_qstage, lambda: dyn['qload'], 250)]
    for t in range(4): atoms.append((at_qk(0, t), kidx(0, t), 170))
    for bt in range(5):
        atoms.append((at_sm1(bt), none, 150))
        atoms.append((at_sm2(bt, 0), none, 150))
        atoms.append((at_sm2(bt, 1), none, 150))
        if bt in (0, 4): atoms.append((at_xch(bt), none, 400))
        for t in range(4):
            atoms.append((at_pv(bt, t), vidx(bt, t), 150))
            if bt == 0 and t == 3: atoms.append((at_accb, none, 60))
            if bt < 4: atoms.append((at_qk(bt+1, t), kidx(bt+1, t), 170))
    if nocomp:
        def freeall(kind, bt, t):
            def f():
                free[(kind, bt, t)] = True; free['stage'] = True
            return f
        na = atoms[:5] if nocomp != 'all' else []
        if nocomp == 'all':
            for k in range(7): na.append((lambda: stamp('x'), none, 0))
        na.append((freeall('x', 0, 0), none, 0))
        for t in range(4): na.append((freeall('K', 0, t), kidx(0, t), 0))
        for bt in range(5):
            for t in range(4):
                na.append((freeall('V', bt, t), vidx(bt, t), 0))
                if bt == 0 and t == 3 and nocomp != 'all': na.append((lambda: stamp('B done'), none, 0))
                if bt < 4: na.append((freeall('K', bt+1, t), kidx(bt+1, t), 0))
        atoms = na
    ai = 0
    log = []
    while pos[0] < len(stream):
        wait(D - 1)
        issue_next()
        spent = 0
        while pos[0] % period == 0 and ai < len(atoms) and spent < budget and atoms[ai][1]() <= St.landed:
            log.append((pos[0], ai)); atoms[ai][0](); spent += atoms[ai][2]; ai += 1
    assert all(free.get(('K', 4, t)) for t in range(4)), 'QK not finished at stream end'
    ML, OD = QA, QB
    def ld_ml(f):
        for k in range(4): r = f(f'buffer_load_dwordx4 {vr(ML+4*k,4)}, v{vMLo}, {srd(WS)}, 0 offen offset:{16*k} sc1')
        return r
    def ld_o(f):
        for k in range(2): r = f(f'buffer_load_dwordx4 {vr(OD+4*k,4)}, v{vO1o}, {srd(WS)}, 0 offen offset:{1024*k} sc1')
        return r
    iML = ld_ml(vm); iO = ld_o(vm)
    while ai < len(atoms):
        wait_for(atoms[ai][1]())
        log.append((pos[0], ai)); atoms[ai][0](); ai += 1
    stamp('A pv done')
    a(f'ds_write_b128 v{vLDW}, {vr(ACC,4)} offset:{L_ACA}')
    a(f'ds_write_b128 v{vLDW}, {vr(ACC+4,4)} offset:{L_ACA+16}')
    a('s_waitcnt lgkmcnt(0)')
    a('s_barrier')
    a(f's_cmp_lg_u32 s{sW}, 0')
    a.fence()
    a('s_cbranch_scc1 L_oa_skip')
    sum4(L_ACA, True)
    pub_o(0)
    a.fence(); a.label('L_oa_skip')
    stamp('O pub')
    def chk(base, n, tmp):
        cur = None; k = 0
        a(f'v_max3_u32 v{tmp}, v{base}, v{base+1}, v{base+2}'); k = 3
        while k < n:
            if k + 1 < n: a(f'v_max3_u32 v{tmp}, v{tmp}, v{base+k}, v{base+k+1}'); k += 2
            else: a(f'v_max_u32 v{tmp}, v{tmp}, v{base+k}'); k += 1
        a(f'v_cmp_eq_u32 vcc, -1, v{tmp}')
        a('s_nop 0')
    def poll(name, ld, base, n, first_idx):
        a(f's_mov_b32 s{sCNT}, {spin}')
        if first_idx is not None:
            wait_for(first_idx)
            a('s_branch L_%s_chk' % name)
        a.fence(); a.label(f'L_{name}_loop')
        ld(a)
        a(f's_sub_u32 s{sCNT}, s{sCNT}, 1')
        a(f's_cbranch_scc1 L_{name}_ok')
        a('s_waitcnt vmcnt(0)')
        a.label(f'L_{name}_chk')
        chk(base, n, vT0)
        a(f's_cbranch_vccnz L_{name}_loop')
        a.label(f'L_{name}_ok')
    poll('ml', ld_ml, ML, 16, iML)
    stamp('ML ok')
    F0, F1 = S, S+4
    for r in range(4): a(f'v_max_f32 v{TM+r}, v{ML+r}, v{ML+8+r}')
    for ror in (4, 8):
        for r in range(4): a(f'v_max_f32_dpp v{TM+r}, v{TM+r}, v{TM+r} row_ror:{ror} {DPPF}')
    for r in range(4):
        a(f'v_sub_f32 v{F0+r}, v{ML+r}, v{TM+r}')
        a(f'v_sub_f32 v{F1+r}, v{ML+8+r}, v{TM+r}')
    for r in range(8): a(f'v_exp_f32 v{F0+r}, v{F0+r}')
    for r in range(4): a(f'v_mul_f32 v{TM+r}, v{F0+r}, v{ML+4+r}')
    for r in range(4): a(f'v_fmac_f32 v{TM+r}, v{F1+r}, v{ML+12+r}')
    for ror in (4, 8):
        for r in range(4): a(f'v_add_f32_dpp v{TM+r}, v{TM+r}, v{TM+r} row_ror:{ror} {DPPF}')
    for r in range(4): a(f'v_rcp_f32 v{TM+r}, v{TM+r}')
    for r in range(4):
        a(f'v_mul_f32 v{F0+r}, v{F0+r}, v{TM+r}')
        a(f'v_mul_f32 v{F1+r}, v{F1+r}, v{TM+r}')
    St.landed = -1
    a(f's_mov_b32 s{sCNT}, {spin}')
    a('s_waitcnt vmcnt(0)')
    a('s_branch L_o_chk')
    a.fence(); a.label('L_o_loop')
    ld_o(a)
    a(f's_sub_u32 s{sCNT}, s{sCNT}, 1')
    a('s_cbranch_scc1 L_o_ok')
    a('s_waitcnt vmcnt(0)')
    a.label('L_o_chk')
    chk(OD, 8, vT0)
    a('s_cbranch_vccnz L_o_loop')
    a.label('L_o_ok')
    stamp('O ok')
    for t in range(8):
        d = t >> 1
        if t & 1:
            a(f'v_and_b32 v{TM+t}, s{sMSK}, v{OD+d}')
            a(f'v_and_b32 v{TM+8+t}, s{sMSK}, v{OD+4+d}')
        else:
            a(f'v_lshlrev_b32 v{TM+t}, 16, v{OD+d}')
            a(f'v_lshlrev_b32 v{TM+8+t}, 16, v{OD+4+d}')
    for t in range(8): a(f'v_mul_f32 v{TM+t}, v{TM+t}, v{F0+(t&3)}')
    for t in range(8): a(f'v_fmac_f32 v{TM+t}, v{TM+8+t}, v{F1+(t&3)}')
    for ror in (4, 8):
        for t in range(8): a(f'v_add_f32_dpp v{TM+t}, v{TM+t}, v{TM+t} row_ror:{ror} {DPPF}')
    for k in range(4): a(f'v_cvt_pk_bf16_f32 v{P+k}, v{TM+2*k}, v{TM+2*k+1}')
    for h in range(2):
        xs = [sparse(P + 2*h + (r >> 1), r & 1, None, False) for r in range(4)]
        for r in range(4): sparse_mfma(xs[r], where[('W', 0, 4*h + r, 0)][0], h == 0 and r == 0)
    a(f'ds_write_b128 v{vLDW}, {vr(ACC,4)} offset:{L_OUT}')
    a(f'ds_write_b128 v{vLDW}, {vr(ACC+4,4)} offset:{L_OUT+16}')
    a('s_waitcnt lgkmcnt(0)')
    a('s_barrier')
    a(f's_cmp_lg_u32 s{sW}, 0')
    a('s_cbranch_scc1 L_end')
    sum4(L_OUT, True)
    a(f'v_lshl_add_u32 v{vT1}, v{vI16}, 3, v{vG16}')
    a(f'buffer_store_dwordx4 {vr(TM,4)}, v{vT1}, {srd(WS)}, s{sP2w} offen sc1')
    a(f'buffer_store_dwordx4 {vr(TM+4,4)}, v{vT1}, {srd(WS)}, s{sP2w} offen offset:64 sc1')
    stamp('P2 pub')
    a(f'v_lshrrev_b32 v{vT1}, 2, v{vL}')
    a(f'v_lshlrev_b32 v{vT1}, 11, v{vT1}')
    a(f'v_lshl_add_u32 v{vT1}, v{vLDH}, 1, v{vT1}')
    a(f's_add_u32 s5, s{sP2r}, 32768')
    a(f'v_lshrrev_b32 v{vT2}, 5, v{vL}')
    a(f'v_bfe_u32 v{vT3}, v{vL}, 4, 1')
    a(f'v_lshl_add_u32 v{vT2}, v{vT3}, 1, v{vT2}')
    a(f'v_lshlrev_b32 v{vT2}, 11, v{vT2}')
    a(f'v_lshrrev_b32 v{vT3}, 2, v{vLDH}')
    a(f'v_add_u32 v{vT2}, v{vT2}, v{vT3}')
    a(f'v_and_b32 v{vT3}, 12, v{vL}')
    a(f'v_cmp_eq_u32 vcc, 0, v{vT3}')
    a(f'v_mov_b32 v{vT3}, {OOB}')
    a(f'v_cndmask_b32 v{vT2}, v{vT3}, v{vT2}, vcc')
    def ld_p(f):
        f(f'buffer_load_dwordx4 {vr(S,4)}, v{vT1}, {srd(WS)}, s{sP2r} offen sc1')
        f(f'buffer_load_dwordx4 {vr(S+4,4)}, v{vT1}, {srd(WS)}, s5 offen sc1')
    poll('p2', ld_p, S, 8, None)
    stamp('P2 ok')
    for k in range(4): a(f'v_add_f32 v{S+k}, v{S+k}, v{S+4+k}')
    a(f'v_permlane32_swap_b32 v{S}, v{S+1}')
    a(f'v_permlane32_swap_b32 v{S+2}, v{S+3}')
    a(f'v_add_f32 v{S}, v{S}, v{S+1}')
    a(f'v_add_f32 v{S+2}, v{S+2}, v{S+3}')
    a(f'v_permlane16_swap_b32 v{S}, v{S+2}')
    a(f'v_add_f32 v{S}, v{S}, v{S+2}')
    for ror in (4, 8): a(f'v_add_f32_dpp v{S}, v{S}, v{S} row_ror:{ror} {DPPF}')
    a(f'v_cvt_pk_bf16_f32 v{S}, v{S}, v{S}')
    a(f'buffer_store_short v{S}, v{vT2}, {srd(OUT)}, s{sOUT} offen{outsc}')
    if stamps:
        a('s_waitcnt vmcnt(0)')
        stamp('end')
        a('s_waitcnt lgkmcnt(0)')
        if amp is not None:
            r0 = stl[0][0]; rj = stl[amp][0]; re_ = stl[-1][0]
            a(f's_sub_u32 s5, s{rj}, s{r0}')
            a(f's_mul_i32 s5, s5, 9')
            a.label('L_amp')
            a('s_memrealtime s[6:7]')
            a('s_waitcnt lgkmcnt(0)')
            a(f's_sub_u32 s6, s6, s{re_}')
            a('s_cmp_lt_u32 s6, s5')
            a('s_cbranch_scc1 L_amp')
        n = len(stl)
        a(f's_mul_i32 s5, s2, {n*8}')
        a(f's_add_u32 s5, s5, {STAMP_OFF}')
        a(f'v_mov_b32 v{vT1}, {OOB}')
        a(f'v_cmp_eq_u32 vcc, 0, v{vL}')
        a(f'v_cndmask_b32 v{vT1}, v{vT1}, v{vL}, vcc')
        for k, (r, nm) in enumerate(stl):
            a(f'v_mov_b32 v{TM}, s{r}'); a(f'v_mov_b32 v{TM+1}, s{r+1}')
            a(f'buffer_store_dwordx2 {vr(TM,2)}, v{vT1}, {srd(WS)}, s5 offen offset:{8*k}')
            a('s_nop 1')
    a.label('L_end')
    a('s_endpgm')
    for s in slow: a.raw(s)
    a.raw(f'''.section .rodata,"a"
.p2align 6
.amdhsa_kernel {KN}_kernel
  .amdhsa_next_free_vgpr 512
  .amdhsa_next_free_sgpr 102
  .amdhsa_accum_offset 256
  .amdhsa_group_segment_fixed_size 0
  .amdhsa_kernarg_size 104
  .amdhsa_user_sgpr_count 2
  .amdhsa_user_sgpr_kernarg_segment_ptr 1
  .amdhsa_system_sgpr_workgroup_id_x 1
.end_amdhsa_kernel''')
    return a.text(), log, [n for _, n in stl]

if __name__ == '__main__':
    import argparse, ast
    ap = argparse.ArgumentParser()
    ap.add_argument('out'); ap.add_argument('kw', nargs='*')
    args = ap.parse_args()
    kw = {}
    for x in args.kw:
        k, v = x.split('=', 1)
        try: kw[k] = ast.literal_eval(v)
        except Exception: kw[k] = v
    t, log, st = gen(**kw)
    open(args.out, 'w').write(t)
    print('atoms at stream pos:', log)
    print('stamps:', list(enumerate(st)))
```

```python
import sys, math, struct
from asmlib import Asm
KN = 'concat_heads__gqa_block_cached__sliding_block_cached__decode'
HDR = open('cdna_kernels/' + KN + '.s.ref').read().split('; Override launch')[0]

WS_Q  = 0x00000
WS_ML = 0x10000
WS_O1 = 0x20000
WS_P2 = 0xA0000
WS_SIZE = 0x120000
STAMP_OFF = 0x10000000
OOB = 0x7ffffff0
CSC = math.log2(math.e) / math.sqrt(128.0)
def f2u(x): return struct.unpack('<I', struct.pack('<f', x))[0]
DPPF = 'row_mask:0xf bank_mask:0xf'

def gen(D=8, D0=16, poll_gap=8, budget=300, stamps=False, spin=100000, outsc='', NSLOT=96, sflag=True, nocomp=False, noclear=False, clrfirst=False, amp=None, NK=4, period=4, wqspread=True, worot=True, qpos=0, ppos=None, wqi=0, ampwg=None, amp0=0):
    a = Asm()
    WREG = max(NK*4096, 9216)
    L_WQ, L_X = 0, 8192
    L_QP  = 0
    L_MLB = L_QP + 2048
    L_MLA = L_MLB + 128
    L_ACB = L_MLA + 128
    L_ACA = L_ACB + 8192
    L_OUT = L_ACA + 8192
    L_WB  = (L_OUT + 8192 + 1023) // 1024 * 1024
    L_END = L_WB + 4*WREG
    KA, VA, KB, VB, WQ, WO, XS, WS, DBG, OUT = 8, 12, 16, 20, 24, 28, 32, 36, 40, 44
    sW, sT0, sT1, sT2, sT3, sOFF, sC, sFLG, sCNT, sLW = 48, 49, 50, 51, 52, 53, 54, 55, 56, 57
    sQr, sQw, sSL, sCG, sP2w, sP2r, sOUT, sMSK = 58, 59, 60, 61, 62, 63, 64, 65
    pAx, pAk, pAv, pAwq, pAwo, pBx, pBk, pBv, pBwq, pBwo, pOut, pDbg, pWs = range(68, 94, 2)
    srd = lambda r: f's[{r}:{r+3}]'
    vL, vK, vV, vT0, vT1, vT2, vT3, vPOLL = 0, 1, 2, 3, 4, 5, 6, 7
    vSEL = 8
    vM, vLS, vAL, vMC = 12, 13, 14, 15
    QA, QB, S, P, ACC = 16, 32, 48, 64, 72
    XP = 80
    TM = 88
    vLDW, vLDH, vLQ, vG16, vI16, vWOo = 120, 121, 122, 123, 124, 125
    vMLo, vO1o = 126, 127
    vKD, vKR, KT = 128, 132, 136
    def vslot(bt, t, j):
        return ('v', 192 + (t*4 + j)*4) if bt == 0 else ('a', (((bt-1)*4 + t)*4 + j)*4)
    def rr(sl, lo, hi): return f'{sl[0]}[{sl[1]+lo}:{sl[1]+hi}]'
    vr = lambda r, n: f'v[{r}:{r+n-1}]'
    stl = []
    def stamp(name):
        if stamps:
            r = 100 if not stl else 68 + 2*(len(stl)-1)
            assert r <= 98 or not stl
            a(f's_memrealtime s[{r}:{r+1}]'); stl.append((r, name))

    a.raw(HDR.rstrip())
    a.raw(f'; @launch grid=(256,1,1) block=(256,1,1) lds={L_END}')
    a.raw('.amdgcn_target "amdgcn-amd-amdhsa--gfx950"\n.text')
    a.raw(f'.globl {KN}_kernel\n.p2align 8\n.type {KN}_kernel,@function\n{KN}_kernel:')
    a('s_cmp_ge_u32 s2, 256')
    a('s_cbranch_scc1 L_end')
    stamp('start')
    a('s_load_dwordx16 s[68:83], s[0:1], 0')
    a('s_load_dwordx8 s[84:91], s[0:1], 64')
    a('s_load_dwordx2 s[92:93], s[0:1], 96')
    a(f'v_lshrrev_b32 v{vT0}, 6, v0')
    a(f'v_and_b32 v{vL}, 63, v0')
    a(f'v_readfirstlane_b32 s{sW}, v{vT0}')
    a(f'v_lshrrev_b32 v{vG16}, 4, v{vL}')
    a(f'v_lshlrev_b32 v{vG16}, 4, v{vG16}')
    a(f'v_and_b32 v{vI16}, 15, v{vL}')
    a(f'v_lshlrev_b32 v{vI16}, 4, v{vI16}')
    a(f'v_lshlrev_b32 v{vV}, 4, v{vL}')
    a(f'v_lshrrev_b32 v{vT1}, 2, v{vL}')
    a(f'v_lshlrev_b32 v{vT1}, 13, v{vT1}')
    a(f'v_and_b32 v{vT0}, 3, v{vL}')
    a(f'v_lshl_add_u32 v{vT1}, v{vT0}, 4, v{vT1}')
    a(f'v_lshl_add_u32 v{vT2}, v{vG16}, 6, v{vI16}')
    a(f'v_bfe_u32 v{vT3}, v{vL}, 2, 2')
    a(f's_and_b32 s{sT0}, s2, 7')
    a(f's_lshr_b32 s{sT1}, s2, 3')
    a(f's_lshl_b32 s{sT2}, s{sT1}, 21')
    a(f's_lshl_b32 s{sT3}, s{sW}, 12')
    a(f's_add_u32 s{sT2}, s{sT2}, s{sT3}')
    a(f's_lshl_b32 s3, s{sT0}, 18')
    a(f's_add_u32 s3, s3, s{sT2}')
    a(f's_lshl_b32 s4, s{sT0}, 16')
    a(f's_add_u32 s4, s4, s{sT2}')
    a(f's_add_u32 s4, s4, {6144*256}')
    if not wqspread:
        a(f's_and_b32 s5, s{sT1}, 15')
        a(f's_lshl_b32 s6, s{sT0}, 4')
        a(f's_add_u32 s5, s5, s6')
    else:
        a(f's_bfe_u32 s5, s2, 0x30004')
        a(f's_add_u32 s6, s5, s{sT0}')
        a(f's_lshr_b32 s7, s2, 5')
        a(f's_and_b32 s7, s7, 4')
        a(f's_add_u32 s6, s6, s7')
        a(f's_and_b32 s6, s6, 7')
        a(f's_lshl_b32 s5, s5, 3')
        a(f's_add_u32 s5, s5, s6')
        a(f's_lshl_b32 s5, s5, 1')
        a(f's_and_b32 s6, s{sT1}, 1')
        a(f's_add_u32 s5, s5, s6')
    a(f's_lshl_b32 s5, s5, 6')
    a(f's_lshr_b32 s7, s2, 7')
    a(f's_lshl_b32 s6, s7, 15')
    a(f's_add_u32 s{sQw}, s5, s6')
    a(f's_lshl_b32 s6, s{sW}, 20')
    a(f's_add_u32 s5, s5, s6')
    a(f's_mul_i32 s{sLW}, s{sW}, {WREG}')
    a(f's_add_u32 s{sLW}, s{sLW}, {L_WB}')
    a('s_waitcnt lgkmcnt(0)')
    a('s_cmp_eq_u32 s7, 0')
    a(f's_cselect_b32 s{WQ}, s{pAwq}, s{pBwq}')
    a(f's_cselect_b32 s{WQ+1}, s{pAwq+1}, s{pBwq+1}')
    a(f's_cselect_b32 s{XS}, s{pAx}, s{pBx}')
    a(f's_cselect_b32 s{XS+1}, s{pAx+1}, s{pBx+1}')
    a(f's_cselect_b32 s{WO}, s{pAwo}, s{pBwo}')
    a(f's_cselect_b32 s{WO+1}, s{pAwo+1}, s{pBwo+1}')
    a(f's_add_u32 s{WQ}, s{WQ}, s5')
    a(f's_addc_u32 s{WQ+1}, s{WQ+1}, 0')
    a(f's_sub_u32 s{WQ+2}, {512*8192}, s5')
    a(f's_mov_b32 s{WQ+3}, 0x20000')
    class St: issued = 0; landed = -1
    def vm(t):
        a(t); St.issued += 1; return St.issued - 1
    def wait(n):
        n = max(n, 0)
        a(f's_waitcnt vmcnt({n})'); St.landed = max(St.landed, St.issued - n - 1)
    def wait_for(idx):
        if St.landed < idx: wait(St.issued - idx - 1)
    dyn = {}
    def ld_wq(t):
        a(f's_add_u32 m0, s{sLW}, {L_WQ + t*1024}')
        a(f's_mov_b32 s5, {t*16*8192}')
        dyn['wq'] = vm(f'buffer_load_dwordx4 v{vPOLL}, {srd(WQ)}, s5 offen nt lds')
        dyn['nwq'] = t + 1
    a(f'v_mov_b32 v{vPOLL}, v{vT1}')
    for t in range(8 if not wqi else 1): ld_wq(t)
    a(f's_mov_b32 s{XS+2}, 4096')
    a(f's_mov_b32 s{XS+3}, 0x20000')
    a(f's_lshl_b32 s{sOFF}, s{sW}, 8')
    a(f's_add_u32 m0, s{sLW}, {L_X}')
    iWQ = vm(f'buffer_load_dwordx4 v{vT2}, {srd(XS)}, s{sOFF} offen lds')
    def mk(d, p, off, size):
        a(f's_add_u32 s{d}, s{p}, s{off}')
        a(f's_addc_u32 s{d+1}, s{p+1}, 0')
        a(f's_mov_b32 s{d+2}, {size}')
        a(f's_mov_b32 s{d+3}, 0x20000')
    mk(KB, pBk, 4, 3*16384 + 4096); mk(VB, pBv, 4, 3*16384 + 4096)
    mk(KA, pAk, 3, 15*16384 + 4096); mk(VA, pAv, 3, 15*16384 + 4096)
    for d, p, size in ((WS, pWs, WS_SIZE if not stamps else 0x10100000), (DBG, pDbg, 256), (OUT, pOut, 8192)):
        a(f's_mov_b32 s{d}, s{p}'); a(f's_mov_b32 s{d+1}, s{p+1}')
        a(f's_mov_b32 s{d+2}, {size}'); a(f's_mov_b32 s{d+3}, 0x20000')

    stream = []
    for kind, bts in (('V', range(4)), ('K', range(5)), ('V', [4])):
        for bt in bts:
            for t in range(4):
                for j in range(4): stream.append((kind, bt, t, j))
    for t in range(8): stream.append(('W', 0, t, 0))
    where = {}
    free = {}
    pos = [0]
    def issue_next():
        n = pos[0]; kind, bt, t, j = stream[n]; pos[0] += 1
        tt = t if bt == 0 else (bt-1)*4 + t
        if kind == 'W':
            sl = vslot(0, t >> 2, t & 3)
            assert free.get(('V', 0, t >> 2))
            u, r = t >> 2, t & 3
            a(f's_mov_b32 s{sOFF}, {(r*128 + 4*u)*1024}')
            idx = vm(f'buffer_load_dwordx4 {rr(sl,0,3)}, v{vWOo}, {srd(WO)}, s{sOFF} offen nt')
        elif kind == 'K':
            kt = bt*4 + t
            sl = (kt % NK) * 4096
            if kt >= NK: assert free.get(('K', (kt-NK) >> 2, (kt-NK) & 3)), ('K ring', kt)
            else: assert free.get('stage'), 'staging still in use'
            if j == 0:
                a(f's_add_u32 m0, s{sLW}, {sl}')
                a(f's_mov_b32 s{sOFF}, {tt*16384}')
            idx = vm(f'buffer_load_dwordx4 v{vKD+j}, {srd(KB if bt == 0 else KA)}, s{sOFF} offen offset:{j*1024} nt lds')
        else:
            sl = vslot(bt, t, j)
            if j == 0: a(f's_mov_b32 s{sOFF}, {tt*16384}')
            idx = vm(f'buffer_load_dwordx4 {rr(sl,0,3)}, v{vV}, {srd(VB if bt == 0 else VA)}, s{sOFF} offen offset:{j*1024} nt')
        where[(kind, bt, t, j)] = (sl, idx, n)
        if wqi and dyn['nwq'] < 8 and pos[0] % wqi == 0:
            if St.issued >= D0: wait(D - 1)
            ld_wq(dyn['nwq'])
    while St.issued < D0: issue_next()

    a(f's_and_b32 s3, s{sT1}, 7')
    a(f's_lshr_b32 s4, s2, 6')
    a(f's_lshl_b32 s5, s3, 5')
    a(f's_lshl_b32 s6, s4, 3')
    a(f's_add_u32 s5, s5, s6')
    a(f's_add_u32 s{sSL}, s5, s{sT0}')
    a(f's_lshl_b32 s5, s4, 13')
    a(f's_lshl_b32 s6, s3, 10')
    a(f's_add_u32 s{sQr}, s5, s6')
    a(f's_and_b32 s3, s{sT1}, 3')
    a(f's_bfe_u32 s4, s2, 0x20005')
    a(f's_lshl_b32 s5, s7, 3')
    a(f's_add_u32 s{sCG}, s5, s{sT0}')
    a(f's_lshl_b32 s5, s{sT0}, 2')
    a(f's_add_u32 s5, s5, s4')
    a(f's_lshl_b32 s6, s7, 2')
    a(f's_add_u32 s6, s6, s3')
    a(f's_lshl_b32 s{sT2}, s6, 16')
    a(f's_add_u32 s{sT2}, s{sT2}, {WS_P2}')
    a(f's_lshl_b32 s{sT3}, s5, 11')
    a(f's_add_u32 s{sP2w}, s{sT2}, s{sT3}')
    a(f's_lshl_b32 s{sT3}, s5, 6')
    a(f's_add_u32 s{sP2r}, s{sT2}, s{sT3}')
    a(f's_lshl_b32 s6, s6, 8')
    a(f's_lshl_b32 s{sT3}, s5, 3')
    a(f's_add_u32 s{sOUT}, s6, s{sT3}')
    if worot:
        a(f's_add_u32 s4, s4, s{sW}')
        a(f's_and_b32 s4, s4, 3')
    a(f's_lshl_b32 s5, s{sT0}, 9')
    a(f's_lshl_b32 s6, s{sW}, 5')
    a(f's_add_u32 s5, s5, s6')
    a(f's_add_u32 s5, s5, s4')
    a(f's_lshl_b32 s5, s5, 10')
    a(f's_lshl_b32 s6, s3, 8')
    a(f's_add_u32 s5, s5, s6')
    a(f's_add_u32 s{WO}, s{WO}, s5')
    a(f's_addc_u32 s{WO+1}, s{WO+1}, 0')
    a(f's_sub_u32 s{WO+2}, {4096*1024}, s5')
    a(f's_mov_b32 s{WO+3}, 0x20000')
    a(f'v_lshl_add_u32 v{vWOo}, v{vG16}, 9, v{vI16}')
    a(f'v_lshlrev_b32 v{vT1}, 1, v{vT3}')
    a(f'v_lshl_add_u32 v{vT1}, v{vT0}, 3, v{vT1}')
    a(f's_lshl_b32 s5, s{sCG}, 10')
    a(f's_add_u32 s5, s5, {WS_ML}')
    a(f'v_lshl_add_u32 v{vMLo}, v{vT1}, 5, s5')
    a(f's_lshl_b32 s5, s{sCG}, 15')
    a(f's_lshl_b32 s6, s4, 8')
    a(f's_add_u32 s5, s5, s6')
    a(f's_lshl_b32 s6, s{sW}, 6')
    a(f's_add_u32 s5, s5, s6')
    a(f's_add_u32 s5, s5, {WS_O1}')
    a(f'v_lshl_add_u32 v{vO1o}, v{vT1}, 10, v{vG16}')
    a(f'v_add_u32 v{vO1o}, s5, v{vO1o}')
    a(f's_lshl_b32 s5, s{sW}, 18')
    a(f's_lshl_b32 s6, s{sSL}, 10')
    a(f's_add_u32 s5, s5, s6')
    a(f's_add_u32 s5, s5, {WS_O1}')
    a(f's_lshl_b32 s6, s{sW}, 10')
    a(f's_add_u32 s6, s6, s{sP2w}')
    a(f's_sub_u32 s6, s6, 2048')
    a(f's_cmp_lt_u32 s{sW}, 2')
    a(f's_cselect_b32 s5, s5, s6')
    for k in range(4): a(f'v_mov_b32 v{TM+k}, -1')
    if not noclear: vm(f'buffer_store_dwordx4 {vr(TM,4)}, v{vV}, {srd(WS)}, s5 offen sc1')
    a(f's_lshl_b32 s5, s{sW}, 13')
    a(f's_lshl_b32 s6, s{sSL}, 5')
    a(f's_add_u32 s5, s5, s6')
    a(f's_add_u32 s5, s5, {WS_ML}')
    a(f's_cmp_lt_u32 s{sW}, 2')
    a(f's_cselect_b32 s6, 2, 0')
    a(f'v_mov_b32 v{vT2}, {OOB}')
    a(f'v_cmp_gt_u32 vcc, s6, v{vL}')
    a(f'v_cndmask_b32 v{vT2}, v{vT2}, v{vV}, vcc')
    iCLR = vm(f'buffer_store_dwordx4 {vr(TM,4)}, v{vT2}, {srd(WS)}, s5 offen sc1') if not noclear else -1
    for hf in range(2):
        lo = 0x0c0c0000 | ((2*hf+1) << 8) | (2*hf)
        hi = ((2*hf+1) << 24) | ((2*hf) << 16) | 0x0c0c
        for x in range(2):
            r = vSEL + 2*hf + x
            a(f'v_mov_b32 v{r}, 0x0c0c0c0c')
            a(f'v_mov_b32 v{vT1}, {lo}')
            a(f'v_cmp_eq_u32 vcc, {2*x}, v{vT3}')
            a(f'v_cndmask_b32 v{r}, v{r}, v{vT1}, vcc')
            a(f'v_mov_b32 v{vT1}, {hi}')
            a(f'v_cmp_eq_u32 vcc, {2*x+1}, v{vT3}')
            a(f'v_cndmask_b32 v{r}, v{r}, v{vT1}, vcc')
    a(f's_mov_b32 s{sC}, {f2u(CSC)}')
    a(f's_mov_b32 s{sFLG}, 0x01010101')
    a(f's_mov_b32 s{sMSK}, 0xffff0000')
    a(f's_lshl_b32 s5, s{sW}, 11')
    a(f'v_lshl_add_u32 v{vLDW}, v{vL}, 5, s5')
    a(f'v_lshlrev_b32 v{vLDH}, 3, v{vT0}')
    a(f'v_lshl_add_u32 v{vLQ}, v{vT0}, 8, v{vG16}')
    a(f'v_add_u32 v{vLQ}, s{sLW}, v{vLQ}')

    a(f'v_lshlrev_b32 v{vT1}, 2, v{vG16}')
    a(f'v_xor_b32 v{vT1}, v{vT1}, v{vV}')
    for j in range(4): a(f'v_xor_b32 v{vKD+j}, {16*j}, v{vT1}')
    a(f'v_lshlrev_b32 v{vT1}, 4, v{vT0}')
    a(f'v_xor_b32 v{vT1}, v{vT1}, v{vG16}')
    a(f'v_lshl_add_u32 v{vT1}, v{vT3}, 6, v{vT1}')
    a(f'v_lshl_add_u32 v{vT1}, v{vT3}, 8, v{vT1}')
    a(f'v_lshl_add_u32 v{vT1}, v{vT0}, 10, v{vT1}')
    for j in range(4):
        a(f'v_xor_b32 v{vKR+j}, {64*j}, v{vT1}')
        a(f'v_add_u32 v{vKR+j}, s{sLW}, v{vKR+j}')
    xp = [0]
    def sparse(pk, hf, sl, first):
        x = XP + 2*(xp[0] % 4); xp[0] += 1
        a(f'v_perm_b32 v{x}, v{pk}, v{pk}, v{vSEL+2*hf}')
        a(f'v_perm_b32 v{x+1}, v{pk}, v{pk}, v{vSEL+2*hf+1}')
        return x
    def sparse_mfma(x, sl, first):
        for u in range(2):
            c = '0' if first else vr(ACC+4*u, 4)
            a(f'v_mfma_f32_16x16x16_bf16 {vr(ACC+4*u,4)}, {vr(x,2)}, {rr(sl,2*u,2*u+1)}, {c}')
    slow = []
    def at_qproj():
        stamp('wq landed')
        a(f'v_lshlrev_b32 v{vT1}, 5, v{vG16}')
        a(f'v_lshl_add_u32 v{vT1}, v{vT3}, 6, v{vT1}')
        a(f'v_add3_u32 v{vT1}, v{vT1}, v{vLDH}, s{sLW}')
        for ks in range(4):
            a(f'ds_read_b128 {vr(S+4*ks,4)}, v{vLQ} offset:{L_X + 64*ks}')
        for ks in range(4):
            for ct in range(2):
                for z in range(2):
                    a(f'ds_read_b64_tr_b16 {vr(TM + (ks*2+ct)*4 + 2*z, 2)}, v{vT1} offset:{L_WQ + (32*ks + 4*z)*64 + 32*ct}')
        a('s_waitcnt lgkmcnt(0)')
        for ks in range(4):
            for ct in range(2):
                c = '0' if ks == 0 else vr(ACC+4*ct, 4)
                a(f'v_mfma_f32_16x16x32_bf16 {vr(ACC+4*ct,4)}, {vr(S+4*ks,4)}, {vr(TM+(ks*2+ct)*4,4)}, {c}')
        a(f's_lshl_b32 s5, s{sW}, 9')
        a(f'v_add_u32 v{vT1}, s5, v{vI16}')
        a(f'ds_write_b128 v{vT1}, {vr(ACC,4)} offset:{L_QP}')
        a(f'ds_write_b128 v{vT1}, {vr(ACC+4,4)} offset:{L_QP+256}')
        a('s_waitcnt lgkmcnt(0)')
        a('s_barrier')
        a(f's_cmp_lg_u32 s{sW}, 0')
        a.fence()
        a('s_cbranch_scc1 L_q_skip')
        a(f'v_lshrrev_b32 v{vT1}, 2, v{vG16}')
        a(f'v_lshl_add_u32 v{vT1}, v{vI16}, 1, v{vT1}')
        a(f'v_add_u32 v{vT1}, {L_QP}, v{vT1}')
        a(f'v_add_u32 v{vT2}, 1024, v{vT1}')
        a(f'ds_read2_b32 {vr(TM,2)}, v{vT1} offset0:0 offset1:4')
        a(f'ds_read2_b32 {vr(TM+2,2)}, v{vT1} offset0:128 offset1:132')
        a(f'ds_read2_b32 {vr(TM+4,2)}, v{vT2} offset0:0 offset1:4')
        a(f'ds_read2_b32 {vr(TM+6,2)}, v{vT2} offset0:128 offset1:132')
        a(f'v_lshlrev_b32 v{vT1}, 9, v{vG16}')
        a(f'v_lshrrev_b32 v{vT2}, 2, v{vI16}')
        a(f'v_add_u32 v{vT1}, v{vT1}, v{vT2}')
        a('s_waitcnt lgkmcnt(0)')
        for k in range(2):
            a(f'v_add_f32 v{TM+k}, v{TM+k}, v{TM+2+k}')
            a(f'v_add_f32 v{TM+4+k}, v{TM+4+k}, v{TM+6+k}')
        for k in range(2): a(f'v_add_f32 v{TM+k}, v{TM+k}, v{TM+4+k}')
        a(f'v_cvt_pk_bf16_f32 v{TM}, v{TM}, v{TM+1}')
        a(f'buffer_store_dword v{TM}, v{vT1}, {srd(WS)}, s{sQw} offen sc1')
        a.fence(); a.label('L_q_skip')
        dyn['qstore'] = St.issued
        free['stage'] = True
        stamp('q stored')
    def at_flag():
        a(f's_cmp_lg_u32 s{sW}, 0')
        a.fence()
        a('s_cbranch_scc1 L_f_skip')
        a(f's_and_b32 s5, s2, 3')
        a(f's_lshl_b32 s5, s5, 6')
        a(f's_mov_b32 s6, 1')
        a(f's_atomic_add s6, s[{DBG}:{DBG+1}], s5')
        a.fence(); a.label('L_f_skip')
        dyn['flagpos'] = pos[0]
        stamp('flag')
    def at_poll():
        a(f'v_lshlrev_b32 v{vT1}, 3, v{vLDH}')
        dyn['poll'] = vm(f'buffer_load_dword v{vPOLL}, v{vT1}, {srd(DBG)}, 0 offen sc1')
    def at_pollchk():
        stamp('poll back')
        a(f'v_cmp_gt_u32 vcc, 64, v{vPOLL}')
        a('s_nop 0')
        a('s_cbranch_vccnz L_p0_slow')
        a.label('L_p0_ok')
        slow.append(f'''L_p0_slow:
    s_mov_b32 s{sCNT}, {spin}
    v_lshlrev_b32 v{vT1}, 3, v{vLDH}
L_p0_loop:
    buffer_load_dword v{vPOLL}, v{vT1}, {srd(DBG)}, 0 offen sc1
    s_sub_u32 s{sCNT}, s{sCNT}, 1
    s_cbranch_scc1 L_p0_ok
    s_waitcnt vmcnt(0)
    v_cmp_gt_u32 vcc, 64, v{vPOLL}
    s_nop 0
    s_cbranch_vccnz L_p0_loop
    s_branch L_p0_ok''')
        stamp('poll ok')
        vm(f'buffer_load_dwordx4 {vr(TM,4)}, v{vV}, {srd(WS)}, s{sQr} offen sc1')
        a(f's_add_u32 s5, s{sQr}, 32768')
        dyn['qload'] = vm(f'buffer_load_dwordx4 {vr(TM+4,4)}, v{vV}, {srd(WS)}, s5 offen sc1')
    def at_qstage():
        stamp('q back')
        a(f's_lshl_b32 s5, s{sW}, 11')
        a(f'v_add_u32 v{vT1}, s5, v{vV}')
        a(f'ds_write_b128 v{vT1}, {vr(TM,4)} offset:{L_ACA}')
        a(f'ds_write_b128 v{vT1}, {vr(TM+4,4)} offset:{L_ACA+1024}')
        a(f's_sub_u32 s5, s5, s{sLW}')
        a(f'v_add_u32 v{vT1}, s5, v{vLQ}')
        a('s_waitcnt lgkmcnt(0)')
        for j in range(4):
            a(f'ds_read_b128 {vr(QB+4*j,4)}, v{vT1} offset:{L_ACA+1024+64*j}')
        for j in range(4):
            a(f'ds_read_b128 {vr(QA+4*j,4)}, v{vT1} offset:{L_ACA+64*j}')
        a('s_waitcnt lgkmcnt(0)')
    def at_qk(bt, t):
        def f():
            Q = QB if bt == 0 else QA
            sl = where[('K', bt, t, 0)][0]
            kt = KT + 16*(t & 1)
            for j in range(4):
                a(f'ds_read_b128 {vr(kt+4*j,4)}, v{vKR+j} offset:{sl}')
            for j in range(4):
                a(f's_waitcnt lgkmcnt({0 if stamps else 3-j})')
                c = '0' if j == 0 else vr(S+4*t, 4)
                a(f'v_mfma_f32_16x16x32_bf16 {vr(S+4*t,4)}, {vr(kt+4*j,4)}, {vr(Q+4*j,4)}, {c}')
            free[('K', bt, t)] = True
        return f
    def xrow(reg, tmp, op):
        for sw in ('v_permlane32_swap_b32', 'v_permlane16_swap_b32'):
            a(f'v_mov_b32 v{tmp}, v{reg}')
            a(f'{sw} v{reg}, v{tmp}')
            a(f'{op} v{reg}, v{reg}, v{tmp}')
    def at_sm1(bt):
        def f():
            first = bt in (0, 1)
            a(f'v_max3_f32 v{TM}, v{S}, v{S+1}, v{S+2}')
            a(f'v_max3_f32 v{TM+1}, v{S+3}, v{S+4}, v{S+5}')
            a(f'v_max3_f32 v{TM+2}, v{S+6}, v{S+7}, v{S+8}')
            a(f'v_max3_f32 v{TM+3}, v{S+9}, v{S+10}, v{S+11}')
            a(f'v_max3_f32 v{TM}, v{TM}, v{S+12}, v{S+13}')
            a(f'v_max3_f32 v{TM+1}, v{TM+1}, v{S+14}, v{S+15}')
            a(f'v_max3_f32 v{TM}, v{TM}, v{TM+2}, v{TM+3}')
            if first: a(f'v_max_f32 v{vM}, v{TM}, v{TM+1}')
            else: a(f'v_max3_f32 v{vM}, v{vM}, v{TM}, v{TM+1}')
            xrow(vM, TM, 'v_max_f32')
            if not first: a(f'v_mov_b32 v{vAL}, v{vMC}')
            a(f'v_mul_f32 v{vMC}, s{sC}, v{vM}')
            if not first:
                a(f'v_sub_f32 v{TM}, v{vAL}, v{vMC}')
                a(f'v_exp_f32 v{TM}, v{TM}')
                a(f'v_mul_f32 v{vLS}, v{vLS}, v{TM}')
                if bt != 4:
                    for u in range(2):
                        for r in range(4):
                            a(f'v_mul_f32_dpp v{ACC+4*u+r}, v{TM}, v{ACC+4*u+r} quad_perm:[{r},{r},{r},{r}] {DPPF}')
        return f
    def at_sm2(bt, half):
        def f():
            first = bt in (0, 1)
            rs = range(8*half, 8*half+8)
            for k in rs: a(f'v_fma_f32 v{S+k}, v{S+k}, s{sC}, -v{vMC}')
            for k in rs: a(f'v_exp_f32 v{S+k}, v{S+k}')
            b = S + 8*half
            a(f'v_add_f32 v{TM}, v{b}, v{b+1}')
            a(f'v_add_f32 v{TM+1}, v{b+2}, v{b+3}')
            a(f'v_add_f32 v{TM+2}, v{b+4}, v{b+5}')
            a(f'v_add_f32 v{TM+3}, v{b+6}, v{b+7}')
            a(f'v_add_f32 v{TM}, v{TM}, v{TM+1}')
            a(f'v_add_f32 v{TM+2}, v{TM+2}, v{TM+3}')
            if first and half == 0: a(f'v_add_f32 v{vLS}, v{TM}, v{TM+2}')
            else:
                a(f'v_add_f32 v{TM}, v{TM}, v{TM+2}')
                a(f'v_add_f32 v{vLS}, v{vLS}, v{TM}')
            if bt not in (0, 4):
                for k in range(4): a(f'v_cvt_pk_bf16_f32 v{P+4*half+k}, v{b+2*k}, v{b+2*k+1}')
        return f
    def sum4(base, own):
        a(f'v_lshlrev_b32 v{vT1}, 5, v{vL}')
        ws_ = range(1, 4) if own else range(4)
        for w in ws_:
            for u in range(2):
                a(f'ds_read_b128 {vr(TM+8*w+4*u,4)}, v{vT1} offset:{base + w*2048 + u*16}')
        a('s_waitcnt lgkmcnt(0)')
        src0 = ACC if own else TM
        for k in range(0, 8, 2):
            a(f'v_pk_add_f32 {vr(TM+k,2)}, {vr(src0+k,2)}, {vr(TM+8+k,2)}')
            a(f'v_pk_add_f32 {vr(TM+16+k,2)}, {vr(TM+16+k,2)}, {vr(TM+24+k,2)}')
        for k in range(0, 8, 2):
            a(f'v_pk_add_f32 {vr(TM+k,2)}, {vr(TM+k,2)}, {vr(TM+16+k,2)}')
    def pub_o(branch):
        for k in range(4): a(f'v_cvt_pk_bf16_f32 v{TM+k}, v{TM+2*k}, v{TM+2*k+1}')
        a(f's_lshl_b32 s5, s{sSL}, 10')
        a(f's_add_u32 s5, s5, {WS_O1 + branch*0x40000}')
        a(f'buffer_store_dwordx4 {vr(TM,4)}, v{vV}, {srd(WS)}, s5 offen sc1')
    def at_xch(bt):
        def f():
            lb = L_MLB if bt == 0 else L_MLA
            branch = 1 if bt == 0 else 0
            xrow(vLS, TM, 'v_add_f32')
            a(f'v_mov_b32 v{TM}, v{vMC}')
            a(f'v_mov_b32 v{TM+1}, v{vLS}')
            a(f's_lshl_b32 s5, s{sW}, 5')
            a(f'v_add_u32 v{vT1}, s5, v{vLDH}')
            a(f'ds_write_b64 v{vT1}, {vr(TM,2)} offset:{lb}')
            a('s_waitcnt lgkmcnt(0)')
            a('s_barrier')
            for w in range(4): a(f'ds_read_b64 {vr(TM+2*w,2)}, v{vLDH} offset:{lb+32*w}')
            a('s_waitcnt lgkmcnt(0)')
            a(f'v_max3_f32 v{TM+8}, v{TM}, v{TM+2}, v{TM+4}')
            a(f'v_max_f32 v{TM+8}, v{TM+8}, v{TM+6}')
            a(f'v_sub_f32 v{TM+9}, v{vMC}, v{TM+8}')
            a(f'v_exp_f32 v{TM+9}, v{TM+9}')
            if bt == 4:
                a(f'v_sub_f32 v{TM+10}, v{vAL}, v{TM+8}')
                a(f'v_exp_f32 v{TM+10}, v{TM+10}')
            for k in range(16): a(f'v_mul_f32 v{S+k}, v{S+k}, v{TM+9}')
            for k in range(8): a(f'v_cvt_pk_bf16_f32 v{P+k}, v{S+2*k}, v{S+2*k+1}')
            if bt == 4:
                for u in range(2):
                    for r in range(4):
                        a(f'v_mul_f32_dpp v{ACC+4*u+r}, v{TM+10}, v{ACC+4*u+r} quad_perm:[{r},{r},{r},{r}] {DPPF}')
            a(f's_cmp_lg_u32 s{sW}, 0')
            a.fence()
            a(f's_cbranch_scc1 L_ml{bt}_skip')
            for w in range(4):
                a(f'v_sub_f32 v{TM+2*w}, v{TM+2*w}, v{TM+8}')
            for w in range(4):
                a(f'v_exp_f32 v{TM+2*w}, v{TM+2*w}')
            a(f'v_mul_f32 v{TM+9}, v{TM}, v{TM+1}')
            for w in range(1, 4): a(f'v_fmac_f32 v{TM+9}, v{TM+2*w}, v{TM+2*w+1}')
            a(f'v_cmp_gt_u32 vcc, 4, v{vL}')
            a(f'v_cndmask_b32 v{TM+9}, v{TM+9}, v{TM+8}, vcc')
            a(f'v_lshlrev_b32 v{vT1}, 2, v{vL}')
            a(f'v_mov_b32 v{vT2}, {OOB}')
            a(f'v_cmp_gt_u32 vcc, 8, v{vL}')
            a(f'v_cndmask_b32 v{vT1}, v{vT2}, v{vT1}, vcc')
            a(f's_lshl_b32 s5, s{sSL}, 5')
            a(f's_add_u32 s5, s5, {WS_ML + branch*8192}')
            a(f'buffer_store_dword v{TM+9}, v{vT1}, {srd(WS)}, s5 offen sc1')
            a.fence(); a.label(f'L_ml{bt}_skip')
            if bt == 4:
                a(f's_cmp_lg_u32 s{sW}, 1')
                a.fence()
                a(f's_cbranch_scc1 L_ob_skip')
                sum4(L_ACB, False)
                pub_o(1)
                a.fence(); a.label('L_ob_skip')
        return f
    def at_pv(bt, t):
        def f():
            xs = []
            for r in range(4):
                sl, idx, n = where[('V', bt, t, r)]
                xs.append(sparse(P + 2*t + (r >> 1), r & 1, sl, False))
            for r in range(4):
                sl, idx, n = where[('V', bt, t, r)]
                sparse_mfma(xs[r], sl, bt in (0, 1) and t == 0 and r == 0)
            free[('V', bt, t)] = True
        return f
    def at_accb():
        a(f'ds_write_b128 v{vLDW}, {vr(ACC,4)} offset:{L_ACB}')
        a(f'ds_write_b128 v{vLDW}, {vr(ACC+4,4)} offset:{L_ACB+16}')
        stamp('B done')
    kidx = lambda bt, t: (lambda: where[('K', bt, t, 3)][1] if ('K', bt, t, 3) in where else 1 << 30)
    vidx = lambda bt, t: (lambda: where[('V', bt, t, 3)][1] if ('V', bt, t, 3) in where else 1 << 30)
    none = lambda: -1
    atoms = [(at_qproj, lambda: max(iWQ, iCLR, dyn['wq']) if pos[0] >= qpos and dyn['nwq'] == 8 else 1 << 30, 400),
             (at_flag, lambda: dyn['qstore'], 20),
             (at_poll, lambda: -1 if pos[0] >= (dyn['flagpos'] + poll_gap if ppos is None else ppos) else 1 << 30, 10),
             (at_pollchk, lambda: dyn['poll'], 20),
             (at_qstage, lambda: dyn['qload'], 250)]
    for t in range(4): atoms.append((at_qk(0, t), kidx(0, t), 170))
    for bt in range(5):
        atoms.append((at_sm1(bt), none, 150))
        atoms.append((at_sm2(bt, 0), none, 150))
        atoms.append((at_sm2(bt, 1), none, 150))
        if bt in (0, 4): atoms.append((at_xch(bt), none, 400))
        for t in range(4):
            atoms.append((at_pv(bt, t), vidx(bt, t), 150))
            if bt == 0 and t == 3: atoms.append((at_accb, none, 60))
            if bt < 4: atoms.append((at_qk(bt+1, t), kidx(bt+1, t), 170))
    if nocomp:
        def freeall(kind, bt, t):
            def f():
                free[(kind, bt, t)] = True; free['stage'] = True
            return f
        na = atoms[:5] if nocomp != 'all' else []
        if nocomp == 'all':
            for k in range(7): na.append((lambda: stamp('x'), none, 0))
        na.append((freeall('x', 0, 0), none, 0))
        for t in range(4): na.append((freeall('K', 0, t), kidx(0, t), 0))
        for bt in range(5):
            for t in range(4):
                na.append((freeall('V', bt, t), vidx(bt, t), 0))
                if bt == 0 and t == 3 and nocomp != 'all': na.append((lambda: stamp('B done'), none, 0))
                if bt < 4: na.append((freeall('K', bt+1, t), kidx(bt+1, t), 0))
        atoms = na
    ai = 0
    log = []
    while pos[0] < len(stream):
        wait(D - 1)
        issue_next()
        spent = 0
        while pos[0] % period == 0 and ai < len(atoms) and spent < budget and atoms[ai][1]() <= St.landed:
            log.append((pos[0], ai)); atoms[ai][0](); spent += atoms[ai][2]; ai += 1
    assert all(free.get(('K', 4, t)) for t in range(4)), 'QK not finished at stream end'
    ML, OD = QA, QB
    def ld_ml(f):
        for k in range(4): r = f(f'buffer_load_dwordx4 {vr(ML+4*k,4)}, v{vMLo}, {srd(WS)}, 0 offen offset:{16*k} sc1')
        return r
    def ld_o(f):
        for k in range(2): r = f(f'buffer_load_dwordx4 {vr(OD+4*k,4)}, v{vO1o}, {srd(WS)}, 0 offen offset:{1024*k} sc1')
        return r
    iML = ld_ml(vm); iO = ld_o(vm)
    while ai < len(atoms):
        wait_for(atoms[ai][1]())
        log.append((pos[0], ai)); atoms[ai][0](); ai += 1
    stamp('A pv done')
    a(f'ds_write_b128 v{vLDW}, {vr(ACC,4)} offset:{L_ACA}')
    a(f'ds_write_b128 v{vLDW}, {vr(ACC+4,4)} offset:{L_ACA+16}')
    a('s_waitcnt lgkmcnt(0)')
    a('s_barrier')
    a(f's_cmp_lg_u32 s{sW}, 0')
    a.fence()
    a('s_cbranch_scc1 L_oa_skip')
    sum4(L_ACA, True)
    pub_o(0)
    a.fence(); a.label('L_oa_skip')
    stamp('O pub')
    def chk(base, n, tmp):
        cur = None; k = 0
        a(f'v_max3_u32 v{tmp}, v{base}, v{base+1}, v{base+2}'); k = 3
        while k < n:
            if k + 1 < n: a(f'v_max3_u32 v{tmp}, v{tmp}, v{base+k}, v{base+k+1}'); k += 2
            else: a(f'v_max_u32 v{tmp}, v{tmp}, v{base+k}'); k += 1
        a(f'v_cmp_eq_u32 vcc, -1, v{tmp}')
        a('s_nop 0')
    def poll(name, ld, base, n, first_idx):
        a(f's_mov_b32 s{sCNT}, {spin}')
        if first_idx is not None:
            wait_for(first_idx)
            a('s_branch L_%s_chk' % name)
        a.fence(); a.label(f'L_{name}_loop')
        ld(a)
        a(f's_sub_u32 s{sCNT}, s{sCNT}, 1')
        a(f's_cbranch_scc1 L_{name}_ok')
        a('s_waitcnt vmcnt(0)')
        a.label(f'L_{name}_chk')
        chk(base, n, vT0)
        a(f's_cbranch_vccnz L_{name}_loop')
        a.label(f'L_{name}_ok')
    poll('ml', ld_ml, ML, 16, iML)
    stamp('ML ok')
    F0, F1 = S, S+4
    for r in range(4): a(f'v_max_f32 v{TM+r}, v{ML+r}, v{ML+8+r}')
    for ror in (4, 8):
        for r in range(4): a(f'v_max_f32_dpp v{TM+r}, v{TM+r}, v{TM+r} row_ror:{ror} {DPPF}')
    for r in range(4):
        a(f'v_sub_f32 v{F0+r}, v{ML+r}, v{TM+r}')
        a(f'v_sub_f32 v{F1+r}, v{ML+8+r}, v{TM+r}')
    for r in range(8): a(f'v_exp_f32 v{F0+r}, v{F0+r}')
    for r in range(4): a(f'v_mul_f32 v{TM+r}, v{F0+r}, v{ML+4+r}')
    for r in range(4): a(f'v_fmac_f32 v{TM+r}, v{F1+r}, v{ML+12+r}')
    for ror in (4, 8):
        for r in range(4): a(f'v_add_f32_dpp v{TM+r}, v{TM+r}, v{TM+r} row_ror:{ror} {DPPF}')
    for r in range(4): a(f'v_rcp_f32 v{TM+r}, v{TM+r}')
    for r in range(4):
        a(f'v_mul_f32 v{F0+r}, v{F0+r}, v{TM+r}')
        a(f'v_mul_f32 v{F1+r}, v{F1+r}, v{TM+r}')
    St.landed = -1
    a(f's_mov_b32 s{sCNT}, {spin}')
    a('s_waitcnt vmcnt(0)')
    a('s_branch L_o_chk')
    a.fence(); a.label('L_o_loop')
    ld_o(a)
    a(f's_sub_u32 s{sCNT}, s{sCNT}, 1')
    a('s_cbranch_scc1 L_o_ok')
    a('s_waitcnt vmcnt(0)')
    a.label('L_o_chk')
    chk(OD, 8, vT0)
    a('s_cbranch_vccnz L_o_loop')
    a.label('L_o_ok')
    stamp('O ok')
    for t in range(8):
        d = t >> 1
        if t & 1:
            a(f'v_and_b32 v{TM+t}, s{sMSK}, v{OD+d}')
            a(f'v_and_b32 v{TM+8+t}, s{sMSK}, v{OD+4+d}')
        else:
            a(f'v_lshlrev_b32 v{TM+t}, 16, v{OD+d}')
            a(f'v_lshlrev_b32 v{TM+8+t}, 16, v{OD+4+d}')
    for t in range(8): a(f'v_mul_f32 v{TM+t}, v{TM+t}, v{F0+(t&3)}')
    for t in range(8): a(f'v_fmac_f32 v{TM+t}, v{TM+8+t}, v{F1+(t&3)}')
    for ror in (4, 8):
        for t in range(8): a(f'v_add_f32_dpp v{TM+t}, v{TM+t}, v{TM+t} row_ror:{ror} {DPPF}')
    for k in range(4): a(f'v_cvt_pk_bf16_f32 v{P+k}, v{TM+2*k}, v{TM+2*k+1}')
    for h in range(2):
        xs = [sparse(P + 2*h + (r >> 1), r & 1, None, False) for r in range(4)]
        for r in range(4): sparse_mfma(xs[r], where[('W', 0, 4*h + r, 0)][0], h == 0 and r == 0)
    a(f'ds_write_b128 v{vLDW}, {vr(ACC,4)} offset:{L_OUT}')
    a(f'ds_write_b128 v{vLDW}, {vr(ACC+4,4)} offset:{L_OUT+16}')
    a('s_waitcnt lgkmcnt(0)')
    a('s_barrier')
    a(f's_cmp_lg_u32 s{sW}, 0')
    a('s_cbranch_scc1 L_end')
    sum4(L_OUT, True)
    a(f'v_lshl_add_u32 v{vT1}, v{vI16}, 3, v{vG16}')
    a(f'buffer_store_dwordx4 {vr(TM,4)}, v{vT1}, {srd(WS)}, s{sP2w} offen sc1')
    a(f'buffer_store_dwordx4 {vr(TM+4,4)}, v{vT1}, {srd(WS)}, s{sP2w} offen offset:64 sc1')
    stamp('P2 pub')
    a(f'v_lshrrev_b32 v{vT1}, 2, v{vL}')
    a(f'v_lshlrev_b32 v{vT1}, 11, v{vT1}')
    a(f'v_lshl_add_u32 v{vT1}, v{vLDH}, 1, v{vT1}')
    a(f's_add_u32 s5, s{sP2r}, 32768')
    a(f'v_lshrrev_b32 v{vT2}, 5, v{vL}')
    a(f'v_bfe_u32 v{vT3}, v{vL}, 4, 1')
    a(f'v_lshl_add_u32 v{vT2}, v{vT3}, 1, v{vT2}')
    a(f'v_lshlrev_b32 v{vT2}, 11, v{vT2}')
    a(f'v_lshrrev_b32 v{vT3}, 2, v{vLDH}')
    a(f'v_add_u32 v{vT2}, v{vT2}, v{vT3}')
    a(f'v_and_b32 v{vT3}, 12, v{vL}')
    a(f'v_cmp_eq_u32 vcc, 0, v{vT3}')
    a(f'v_mov_b32 v{vT3}, {OOB}')
    a(f'v_cndmask_b32 v{vT2}, v{vT3}, v{vT2}, vcc')
    def ld_p(f):
        f(f'buffer_load_dwordx4 {vr(S,4)}, v{vT1}, {srd(WS)}, s{sP2r} offen sc1')
        f(f'buffer_load_dwordx4 {vr(S+4,4)}, v{vT1}, {srd(WS)}, s5 offen sc1')
    poll('p2', ld_p, S, 8, None)
    stamp('P2 ok')
    for k in range(4): a(f'v_add_f32 v{S+k}, v{S+k}, v{S+4+k}')
    a(f'v_permlane32_swap_b32 v{S}, v{S+1}')
    a(f'v_permlane32_swap_b32 v{S+2}, v{S+3}')
    a(f'v_add_f32 v{S}, v{S}, v{S+1}')
    a(f'v_add_f32 v{S+2}, v{S+2}, v{S+3}')
    a(f'v_permlane16_swap_b32 v{S}, v{S+2}')
    a(f'v_add_f32 v{S}, v{S}, v{S+2}')
    for ror in (4, 8): a(f'v_add_f32_dpp v{S}, v{S}, v{S} row_ror:{ror} {DPPF}')
    a(f'v_cvt_pk_bf16_f32 v{S}, v{S}, v{S}')
    a(f'buffer_store_short v{S}, v{vT2}, {srd(OUT)}, s{sOUT} offen{outsc}')
    if stamps:
        a('s_waitcnt vmcnt(0)')
        stamp('end')
        a('s_waitcnt lgkmcnt(0)')
        if amp is not None:
            r0 = stl[amp0][0]; rj = stl[amp][0]; re_ = stl[-1][0]
            a(f's_sub_u32 s5, s{rj}, s{r0}')
            a(f's_mul_i32 s5, s5, 9')
            if ampwg is not None:
                a(f's_cmp_ge_u32 s2, {ampwg}')
                a(f's_cselect_b32 s5, s5, 0')
            a.label('L_amp')
            a('s_memrealtime s[6:7]')
            a('s_waitcnt lgkmcnt(0)')
            a(f's_sub_u32 s6, s6, s{re_}')
            a('s_cmp_lt_u32 s6, s5')
            a('s_cbranch_scc1 L_amp')
        n = len(stl)
        a(f's_mul_i32 s5, s2, {n*8}')
        a(f's_add_u32 s5, s5, {STAMP_OFF}')
        a(f'v_mov_b32 v{vT1}, {OOB}')
        a(f'v_cmp_eq_u32 vcc, 0, v{vL}')
        a(f'v_cndmask_b32 v{vT1}, v{vT1}, v{vL}, vcc')
        for k, (r, nm) in enumerate(stl):
            a(f'v_mov_b32 v{TM}, s{r}'); a(f'v_mov_b32 v{TM+1}, s{r+1}')
            a(f'buffer_store_dwordx2 {vr(TM,2)}, v{vT1}, {srd(WS)}, s5 offen offset:{8*k}')
            a('s_nop 1')
    a.label('L_end')
    a('s_endpgm')
    for s in slow: a.raw(s)
    a.raw(f'''.section .rodata,"a"
.p2align 6
.amdhsa_kernel {KN}_kernel
  .amdhsa_next_free_vgpr 512
  .amdhsa_next_free_sgpr 102
  .amdhsa_accum_offset 256
  .amdhsa_group_segment_fixed_size 0
  .amdhsa_kernarg_size 104
  .amdhsa_user_sgpr_count 2
  .amdhsa_user_sgpr_kernarg_segment_ptr 1
  .amdhsa_system_sgpr_workgroup_id_x 1
.end_amdhsa_kernel''')
    return a.text(), log, [n for _, n in stl]

if __name__ == '__main__':
    import argparse, ast
    ap = argparse.ArgumentParser()
    ap.add_argument('out'); ap.add_argument('kw', nargs='*')
    args = ap.parse_args()
    kw = {}
    for x in args.kw:
        k, v = x.split('=', 1)
        try: kw[k] = ast.literal_eval(v)
        except Exception: kw[k] = v
    t, log, st = gen(**kw)
    open(args.out, 'w').write(t)
    print('atoms at stream pos:', log)
    print('stamps:', list(enumerate(st)))
```
